```python
import torch

def _softmax(x, axis=-1):
    return torch.softmax(x, dim=axis)
def _gelu(x):
    return torch.nn.functional.gelu(x, approximate="tanh")
def _silu(x):
    return torch.nn.functional.silu(x)
def _sigmoid(x):
    return torch.sigmoid(x)
def _layernorm(x, axis=-1, eps=1e-5):
    m = x.mean(dim=axis, keepdim=True)
    v = x.var(dim=axis, keepdim=True, unbiased=False)
    return (x - m) / torch.sqrt(v + eps)
def _scatter_add(tgt, idx, src, axis=0):
    return tgt.clone().index_add_(axis, idx, src)
def _segment_sum(src, seg, n):
    out = torch.zeros((n,) + src.shape[1:], dtype=src.dtype)
    return out.index_add_(0, seg, src)
def _pad(x, pw):
    flat = tuple(v for pair in reversed(pw) for v in pair)
    return torch.nn.functional.pad(x, flat)

kernel_name = 'standalone__fused_io_aware_attn__prompt'

def setup_inputs():

    _w = (lambda a: (lambda t: t.to(torch.bfloat16) if t.is_floating_point() else t)(torch.as_tensor(a)))
    B, H, S = 2, 32, 2048
    Dh = max(1, 512 // 32)
    return {
        "q": _w((lambda *s: torch.randn(*s, dtype=torch.bfloat16) * 0.8)(B, H, S, Dh)),
        "k": _w((lambda *s: torch.randn(*s, dtype=torch.bfloat16) * 0.8)(B, H, S, Dh)),
        "v": _w((lambda *s: torch.randn(*s, dtype=torch.bfloat16) * 0.05)(B, H, S, Dh)),
    }

def reference(q, k, v):
    scale = q.shape[-1] ** -0.5
    s = torch.einsum('bhqd,bhkd->bhqk', q, k) * scale
    p = _softmax(s, axis=-1)
    return torch.einsum('bhqk,bhkd->bhqd', p, v)
```

```python
import struct, sys, math

NAME = 'standalone__fused_io_aware_attn__prompt'
def f32(x):
    return struct.unpack('<I', struct.pack('<f', x))[0]

HEADER = '''; Kernarg layout for this problem (48 bytes, ptrs only, base s[0:1]):
'''

class Gen:
    def __init__(self):
        self.lines = []
    def __call__(self, s):
        self.lines.append('    ' + s)
    def label(self, s):
        self.lines.append(s + ':')
    def c(self, s):
        self.lines.append('    ; ' + s)
    def raw(self, s):
        self.lines.append(s)

def vr(base, n):
    return f'v[{base}:{base+n-1}]'

def build(U=4, sync1=1, sync2=3):
    g = Gen()
    SX, SY = 0, 16
    OX, OY = 32, 48
    CX, CY = 64, 80
    QX, QY = 96, 100
    PA, PB = 104, 108
    KB = [112, 116]
    VB = [120, 128]
    vKA, vVA, vVI = 136, 137, 138
    vPat, vLin = 139, 140
    vT0, vT1, vT2, vT3 = 141, 142, 143, 144
    vMX, vMY = 145, 146
    vVA0 = 147
    NV = 148
    sQ, sK, sV, sO = 4, 6, 8, 10
    SRD_Q, SRD_KV, SRD_O = 12, 16, 20
    sWave, sHoff, sQoff, sDoff = 24, 25, 26, 27
    sR, sLimit, sCnt, sFlag = 28, 29, 30, 31
    sT0, sT1, sBias = 32, 33, 34
    LDS_V = 65536
    LDS_ONES = 131072
    LDS_TOTAL = 131072 + 8192
    NIT = 64 // U
    C = f32(0.25 * math.log2(math.e))

    g.raw(HEADER + f'; @launch grid=(256,1,1) block=(512,1,1) lds={LDS_TOTAL}')
    g.raw('.amdgcn_target "amdgcn-amd-amdhsa--gfx950"')
    g.raw('.text')
    g.raw(f'.globl {NAME}_kernel')
    g.raw('.p2align 8')
    g.raw(f'.type {NAME}_kernel,@function')
    g.label(f'{NAME}_kernel')
    g('s_cmp_ge_u32 s2, 256')
    g('s_cbranch_scc1 L_end')
    g('s_load_dwordx8 s[4:11], s[0:1], 0')
    g(f'v_lshrrev_b32 v{vT0}, 6, v0')
    g(f'v_and_b32 v{vT1}, 63, v0')
    g(f'v_readfirstlane_b32 s{sWave}, v{vT0}')
    g(f'v_lshlrev_b32 v{vLin}, 4, v{vT1}')
    g(f'v_and_b32 v{vT2}, 31, v{vT1}')
    g(f'v_lshlrev_b32 v{vT2}, 5, v{vT2}')
    g(f'v_lshrrev_b32 v{vT3}, 5, v{vT1}')
    g(f'v_lshl_add_u32 v{vPat}, v{vT3}, 4, v{vT2}')
    g(f's_and_b32 s{sT0}, s2, 7')
    g(f's_lshr_b32 s{sT1}, s2, 5')
    g(f's_lshl_b32 s{sT1}, s{sT1}, 3')
    g(f's_add_u32 s{sT0}, s{sT0}, s{sT1}')
    g(f's_lshl_b32 s{sHoff}, s{sT0}, 16')
    g(f's_lshr_b32 s{sT1}, s2, 3')
    g(f's_and_b32 s{sT1}, s{sT1}, 3')
    g(f's_lshl_b32 s{sT1}, s{sT1}, 14')
    g(f's_lshl_b32 s{sT0}, s{sWave}, 11')
    g(f's_add_u32 s{sQoff}, s{sHoff}, s{sT1}')
    g(f's_add_u32 s{sQoff}, s{sQoff}, s{sT0}')
    g(f's_and_b32 s{sT0}, s{sWave}, 3')
    g(f's_lshl_b32 s{sT0}, s{sT0}, 10')
    g(f's_add_u32 s{sDoff}, s{sHoff}, s{sT0}')
    g(f's_lshr_b32 s{sT1}, s{sWave}, 2')
    g(f's_lshl_b32 s{sT1}, s{sT1}, 16')
    g(f's_add_u32 s{sT0}, s{sT0}, s{sT1}')
    g(f's_mov_b32 m0, s{sT0}')
    g(f'v_bfe_u32 v{vT0}, v{vT1}, 2, 2')
    g(f'v_lshl_add_u32 v{vT0}, v{vT3}, 2, v{vT0}')
    g(f'v_lshlrev_b32 v{vT0}, 5, v{vT0}')
    g(f'v_and_b32 v{vT2}, 1, v{vT1}')
    g(f'v_lshl_add_u32 v{vT0}, v{vT2}, 4, v{vT0}')
    g(f'v_bfe_u32 v{vT2}, v{vT1}, 1, 1')
    g(f'v_lshl_add_u32 v{vT0}, v{vT2}, 3, v{vT0}')
    g(f'v_add_u32 v{vT0}, {LDS_V}, v{vT0}')
    g(f'v_lshlrev_b32 v{vT2}, 3, v{vT2}')
    g(f'v_xor_b32 v{vT3}, 1, v{vT3}')
    g(f'v_lshl_add_u32 v{vT2}, v{vT3}, 7, v{vT2}')
    g(f'v_add_u32 v{vT2}, {LDS_ONES}, v{vT2}')
    g(f'v_and_b32 v{vT3}, 16, v{vT1}')
    g(f'v_cmp_eq_u32 vcc, 0, v{vT3}')
    g(f'v_mov_b32 v{vT3}, {U*1024}')
    g(f's_cmp_lt_u32 s{sWave}, 4')
    g(f'v_cndmask_b32 v{vVA0}, v{vT2}, v{vT0}, vcc')
    g(f'v_cndmask_b32 v{vVI}, 0, v{vT3}, vcc')
    g('s_waitcnt lgkmcnt(0)')
    g(f's_cselect_b64 s[{SRD_KV}:{SRD_KV+1}], s[{sK}:{sK+1}], s[{sV}:{sV+1}]')
    g(f's_cselect_b64 vcc, -1, 0')
    g(f's_mov_b32 s{SRD_Q}, s{sQ}')
    g(f's_and_b32 s{SRD_Q+1}, s{sQ+1}, 0xffff')
    g(f's_mov_b32 s{SRD_Q+2}, 0x400000')
    g(f's_mov_b32 s{SRD_Q+3}, 0x20000')
    g(f'v_cndmask_b32 v{vT0}, v{vLin}, v{vPat}, vcc')
    g(f'buffer_load_dwordx4 {vr(QX,4)}, v{vPat}, s[{SRD_Q}:{SRD_Q+3}], s{sQoff} offen')
    g(f'buffer_load_dwordx4 {vr(QY,4)}, v{vPat}, s[{SRD_Q}:{SRD_Q+3}], s{sQoff} offen offset:1024')
    g(f's_and_b32 s{SRD_KV+1}, s{SRD_KV+1}, 0xffff')
    g(f's_mov_b32 s{SRD_KV+2}, 0x400000')
    g(f's_mov_b32 s{SRD_KV+3}, 0x20000')
    def dma():
        g(f'buffer_load_dwordx4 v{vT0}, s[{SRD_KV}:{SRD_KV+3}], s{sDoff} offen lds')
        g(f's_add_u32 m0, m0, 0x1000')
        g(f's_add_u32 s{sDoff}, s{sDoff}, 0x1000')
    NPRE = 4
    for r in range(NPRE):
        dma()
    g(f's_mov_b32 s{SRD_O}, s{sO}')
    g(f's_and_b32 s{SRD_O+1}, s{sO+1}, 0xffff')
    g(f's_mov_b32 s{SRD_O+2}, 0x400000')
    g(f's_mov_b32 s{SRD_O+3}, 0x20000')
    g(f's_cmp_lg_u32 s{sWave}, 7')
    g('s_cbranch_scc1 L_noones')
    g(f'v_lshlrev_b32 v{vT2}, 7, v{vT1}')
    g(f'v_add_u32 v{vT2}, {LDS_ONES}, v{vT2}')
    g(f'v_mov_b32 v{PA}, 0x3f80')
    g(f'v_mov_b32 v{PA+1}, 0')
    g(f'v_mov_b32 v{PA+2}, 0')
    g(f'v_mov_b32 v{PA+3}, 0')
    g(f'ds_write_b128 v{vT2}, {vr(PA,4)}')
    g.label('L_noones')
    g(f's_mov_b32 s{sCnt}, 1')
    g(f's_mov_b32 s{sFlag}, 0')
    g(f's_mov_b32 s{sBias}, 0')
    g(f's_mov_b32 s{sLimit}, {sync1}')
    g(f's_mov_b32 s{sT1}, 0x{C:08x}')
    g(f's_waitcnt vmcnt({NPRE})')
    g.c('scale Q by softmax_scale*log2(e)')
    for r in range(8):
        q = QX + r
        g(f'v_lshlrev_b32 v{SX+2*(r%4)}, 16, v{q}')
        g(f'v_and_b32 v{SX+2*(r%4)+1}, 0xffff0000, v{q}')
        g(f'v_mul_f32 v{SX+2*(r%4)}, s{sT1}, v{SX+2*(r%4)}')
        g(f'v_mul_f32 v{SX+2*(r%4)+1}, s{sT1}, v{SX+2*(r%4)+1}')
        g(f'v_cvt_pk_bf16_f32 v{q}, v{SX+2*(r%4)}, v{SX+2*(r%4)+1}')
    g(f's_waitcnt vmcnt({NPRE-2}) lgkmcnt(0)')
    g('s_barrier')
    g(f's_mov_b32 s{sR}, {16-NPRE}')
    g.label('L_dma')
    dma()
    g(f's_sub_u32 s{sR}, s{sR}, 1')
    g(f's_cmp_lg_u32 s{sR}, 0')
    g('s_cbranch_scc1 L_dma')

    g.label('L_maxpass')
    g(f'v_mov_b32 v{vKA}, v{vLin}')
    g(f'v_mov_b32 v{vMX}, 0xff800000')
    g(f'v_mov_b32 v{vMY}, 0xff800000')
    g.label('L_maxloop')
    g(f'ds_read_b128 {vr(KB[0],4)}, v{vKA}')
    g(f'v_add_u32 v{vKA}, 1024, v{vKA}')
    g(f's_sub_u32 s{sCnt}, s{sCnt}, 1')
    g('s_waitcnt lgkmcnt(0)')
    g(f'v_mfma_f32_32x32x16_bf16 {vr(SX,16)}, {vr(KB[0],4)}, {vr(QX,4)}, 0')
    g(f'v_mfma_f32_32x32x16_bf16 {vr(SY,16)}, {vr(KB[0],4)}, {vr(QY,4)}, 0')
    g('s_nop 11')
    for i in range(8):
        g(f'v_max3_f32 v{vMX}, v{SX+2*i}, v{SX+2*i+1}, v{vMX}')
    g('s_nop 3')
    for i in range(8):
        g(f'v_max3_f32 v{vMY}, v{SY+2*i}, v{SY+2*i+1}, v{vMY}')
    g(f's_cmp_lg_u32 s{sCnt}, 0')
    g('s_cbranch_scc1 L_maxloop')
    g(f'v_mov_b32 v{vKA}, v{vLin}')
    g(f'v_mov_b32 v{vVA}, v{vVA0}')
    g(f'v_mov_b32 v{vT0}, v{vMX}')
    g(f'v_mov_b32 v{vT1}, v{vMY}')
    g(f'ds_read_b128 {vr(KB[0],4)}, v{vKA}')
    for k in range(4):
        g(f'ds_read_b64_tr_b16 {vr(VB[0]+2*k,2)}, v{vVA} offset:{256*k}')
    g(f'v_permlane32_swap_b32 v{vMX}, v{vT0}')
    g(f'v_permlane32_swap_b32 v{vMY}, v{vT1}')
    g('s_nop 1')
    g(f'v_max_f32 v{vMX}, v{vMX}, v{vT0}')
    g(f'v_max_f32 v{vMY}, v{vMY}, v{vT1}')
    g(f'v_add_f32 v{vMX}, s{sBias}, v{vMX}')
    g(f'v_add_f32 v{vMY}, s{sBias}, v{vMY}')
    for i in range(16):
        g(f'v_sub_f32 v{CX+i}, 0, v{vMX}')
    for i in range(16):
        g(f'v_sub_f32 v{CY+i}, 0, v{vMY}')
    for i in range(16):
        g(f'v_mov_b32 v{OX+i}, 0')
    g('s_waitcnt lgkmcnt(0)')
    g(f'v_mfma_f32_32x32x16_bf16 {vr(SX,16)}, {vr(KB[0],4)}, {vr(QX,4)}, {vr(CX,16)}')
    for i in range(16):
        g(f'v_mov_b32 v{OY+i}, 0')
    for i in range(3):
        g(f'v_mov_b32 v{PB+i}, 0')
    g(f'v_mov_b32 v{SY+14}, 0')
    g(f'v_mov_b32 v{SY+15}, 0')
    for i in range(4):
        g(f'v_mov_b32 v{VB[1]+4+i}, 0')
    g(f's_mov_b32 s{sR}, 0')

    def phase(S, Sp, O, Op, Cp, Qp, Kq, Vp2, V1, extra):
        def e(i):
            g(f'v_exp_f32 v{S+i}, v{S+i}')
            for s in extra.get(i, []):
                g(s)
        def c(k):
            dst = (PA + k) if k < 4 else (PB + k - 4)
            g(f'v_cvt_pk_bf16_f32 v{dst}, v{S+2*k}, v{S+2*k+1}')
        e(0)
        g(f'v_cvt_pk_bf16_f32 v{PB+3}, v{Sp+14}, v{Sp+15}')
        e(1); e(2)
        g(f'v_mfma_f32_32x32x16_bf16 {vr(Op,16)}, {vr(Vp2,4)}, {vr(PB,4)}, {vr(Op,16)}')
        e(3); c(0); e(4); c(1); e(5); e(6)
        g(f'v_mfma_f32_32x32x16_bf16 {vr(Sp,16)}, {vr(Kq,4)}, {vr(Qp,4)}, {vr(Cp,16)}')
        e(7); c(2); e(8); c(3); e(9); e(10)
        g(f'v_mfma_f32_32x32x16_bf16 {vr(O,16)}, {vr(V1,4)}, {vr(PA,4)}, {vr(O,16)}')
        e(11); c(4); e(12); c(5); e(13); e(14); c(6); e(15)

    g.raw('.p2align 6')
    g.label('L_loop')
    for t in range(U):
        b = t % 2
        nb = 1 - b
        ex = {}
        ex[3] = [f'ds_read_b128 {vr(KB[nb],4)}, v{vKA} offset:{(t+1)*1024}']
        for k in range(4):
            ex[4+k] = [f'ds_read_b64_tr_b16 {vr(VB[nb]+2*k,2)}, v{vVA} offset:{(t+1)*1024+256*k}']
        if t == U - 1:
            ex[9] = [f's_add_u32 s{sR}, s{sR}, 1']
        g.c(f'X phase, tile {t}')
        phase(SX, SY, OX, OY, CY, QY, KB[b], VB[nb]+4, VB[b], ex)
        ex = {5: ['s_waitcnt lgkmcnt(0)']}
        if t == U - 1:
            ex[8] = [f'v_add_u32 v{vKA}, {U*1024}, v{vKA}']
            ex[9] = [f'v_add_u32 v{vVA}, v{vVI}, v{vVA}']
            ex[15] = [f's_cmp_lt_u32 s{sR}, s{sLimit}']
        g.c(f'Y phase, tile {t}')
        phase(SY, SX, OY, OX, CX, QX, KB[nb], VB[b]+4, VB[b], ex)
    g('s_cbranch_scc1 L_loop')
    g(f's_cmp_eq_u32 s{sR}, {NIT}')
    g('s_cbranch_scc1 L_epi')
    g(f's_cmp_eq_u32 s{sR}, {sync1}')
    g('s_cbranch_scc1 L_sync1')
    g('s_waitcnt vmcnt(0)')
    g('s_barrier')
    g(f's_mov_b32 s{sLimit}, {NIT}')
    g('s_branch L_loop')
    g.label('L_sync1')
    g(f's_waitcnt vmcnt({16-NPRE})')
    g('s_barrier')
    g(f's_mov_b32 s{sLimit}, {sync2}')
    g('s_branch L_loop')

    g.label('L_epi')
    lastb = (U - 1) % 2
    g(f'v_cvt_pk_bf16_f32 v{PB+3}, v{SY+14}, v{SY+15}')
    g('s_nop 1')
    g(f'v_mfma_f32_32x32x16_bf16 {vr(OY,16)}, {vr(VB[lastb]+4,4)}, {vr(PB,4)}, {vr(OY,16)}')
    g(f'v_mov_b32 v{vT2}, 0x5d800000')
    g(f'v_mov_b32 v{vT3}, 0x7f800000')
    def chk(O, t):
        g(f'v_add_f32 v{t}, abs(v{O}), abs(v{O+1})')
        for i in range(2, 8):
            g(f'v_add_f32 v{t}, v{t}, abs(v{O+i})')
    chk(OX, vT0)
    g(f'v_cmp_nlt_f32 s[{sT0}:{sT0+1}], v{OX+8}, v{vT2}')
    g(f'v_cmp_nlt_f32 vcc, v{vT0}, v{vT3}')
    g(f'v_rcp_f32 v{vMX}, v{OX+8}')
    g(f's_or_b64 s[{sT0}:{sT0+1}], s[{sT0}:{sT0+1}], vcc')
    g('s_nop 2')
    chk(OY, vT1)
    g(f'v_cmp_nlt_f32 vcc, v{OY+8}, v{vT2}')
    g(f'v_rcp_f32 v{vMY}, v{OY+8}')
    g(f's_or_b64 s[{sT0}:{sT0+1}], s[{sT0}:{sT0+1}], vcc')
    g(f'v_cmp_nlt_f32 vcc, v{vT1}, v{vT3}')
    g('s_nop 0')
    g(f's_or_b64 s[{sT0}:{sT0+1}], s[{sT0}:{sT0+1}], vcc')
    g('s_cbranch_scc0 L_store')
    g(f's_cmp_lg_u32 s{sFlag}, 0')
    g('s_cbranch_scc1 L_store')
    g(f's_mov_b32 s{sFlag}, 1')
    g(f's_mov_b32 s{sCnt}, 64')
    g(f's_mov_b32 s{sBias}, 0x41300000')
    g('s_branch L_maxpass')
    g.label('L_store')
    for (O, M, P, off) in ((OX, vMX, PA, 0), (OY, vMY, PB, 1024)):
        for i in range(8):
            g(f'v_mul_f32 v{O+i}, v{O+i}, v{M}')
        for i in range(4):
            g(f'v_cvt_pk_bf16_f32 v{P+i}, v{O+2*i}, v{O+2*i+1}')
        g(f'buffer_store_dwordx4 {vr(P,4)}, v{vPat}, s[{SRD_O}:{SRD_O+3}], s{sQoff} offen offset:{off}')
    g.label('L_end')
    g('s_endpgm')
    g.raw('.section .rodata,"a"')
    g.raw('.p2align 6')
    g.raw(f'.amdhsa_kernel {NAME}_kernel')
    g.raw(f'  .amdhsa_next_free_vgpr {NV}')
    g.raw('  .amdhsa_next_free_sgpr 40')
    g.raw(f'  .amdhsa_accum_offset {(NV+3)//4*4}')
    g.raw('  .amdhsa_group_segment_fixed_size 0')
    g.raw('  .amdhsa_kernarg_size 48')
    g.raw('  .amdhsa_user_sgpr_count 2')
    g.raw('  .amdhsa_user_sgpr_kernarg_segment_ptr 1')
    g.raw('  .amdhsa_system_sgpr_workgroup_id_x 1')
    g.raw('.end_amdhsa_kernel')
    return '\n'.join(g.lines) + '\n'

if __name__ == '__main__':
    out = sys.argv[1] if len(sys.argv) > 1 else f'cdna_kernels/{NAME}.s'
    open(out, 'w').write(build())
```

```python
import struct, sys, math

NAME = 'standalone__fused_io_aware_attn__prompt'
def f32(x):
    return struct.unpack('<I', struct.pack('<f', x))[0]

HEADER = '''; Kernarg layout for this problem (48 bytes, ptrs only, base s[0:1]):
'''

class Gen:
    def __init__(self):
        self.lines = []
    def __call__(self, s):
        self.lines.append('    ' + s)
    def label(self, s):
        self.lines.append(s + ':')
    def c(self, s):
        self.lines.append('    ; ' + s)
    def raw(self, s):
        self.lines.append(s)

def vr(base, n):
    return f'v[{base}:{base+n-1}]'

def build(loop=0, x=16, bB=0, bC=5, dper=2, stamps=0, prio=1, tail=16, qkpos=4, sp1pos=10):
    g = Gen()
    nst = [0]
    def stamp_s(real=False, idx=None):
        if not stamps: return []
        if idx is None:
            idx = nst[0]; nst[0] += 1
        return [f's_mem{"real" if real else ""}time s[{40+2*idx}:{41+2*idx}]']
    def stamp(real=False, idx=None):
        for s in stamp_s(real, idx): g(s)

    SX, SY = 0, 16
    OX, OY = 32, 48
    CX, CY = 64, 80
    QX, QY = 96, 100
    KB = [104, 108]
    VB = [112, 120]
    vKA, vVA, vVI = 128, 129, 130
    vPat, vDma = 131, 132
    vIdx = 133
    vT0, vT1, vT2, vT3 = 134, 135, 136, 137
    vMX, vMY = 138, 139
    vVA0, vLin = 140, 141
    NV = 142
    sQ, sK, sV, sO = 4, 6, 8, 10
    SRD_Q, SRD_KV, SRD_O, SRD_K = 12, 16, 20, 24
    sWave, sHoff, sQoff, sDoff = 28, 29, 30, 31
    sC = 32
    sT0, sT1 = 34, 35
    sCnt, sFlag = 36, 37
    sWs = 38
    LDS_V = 65536
    LDS_ONES = 131072
    LDS_TOTAL = 131072 + 8192
    VO = [0, 128, 512, 640]
    C = f32(0.25 * math.log2(math.e))

    g.raw(HEADER + f'; @launch grid=(256,1,1) block=(512,1,1) lds={LDS_TOTAL}')
    g.raw('.amdgcn_target "amdgcn-amd-amdhsa--gfx950"')
    g.raw('.text')
    g.raw(f'.globl {NAME}_kernel')
    g.raw('.p2align 8')
    g.raw(f'.type {NAME}_kernel,@function')
    g.label(f'{NAME}_kernel')
    g('s_cmp_ge_u32 s2, 256')
    g('s_cbranch_scc1 L_end')
    g('s_load_dwordx8 s[4:11], s[0:1], 0')
    stamp(True); stamp()
    if stamps: g(f's_load_dwordx2 s[{sWs}:{sWs+1}], s[0:1], 40')
    g(f'v_lshrrev_b32 v{vT0}, 6, v0')
    g(f'v_and_b32 v{vT1}, 63, v0')
    g(f'v_readfirstlane_b32 s{sWave}, v{vT0}')
    g(f'v_lshlrev_b32 v{vLin}, 4, v{vT1}')
    g(f'v_and_b32 v{vT2}, 31, v{vT1}')
    g(f'v_lshlrev_b32 v{vT2}, 5, v{vT2}')
    g(f'v_lshrrev_b32 v{vT3}, 5, v{vT1}')
    g(f'v_lshl_add_u32 v{vPat}, v{vT3}, 4, v{vT2}')
    g(f's_and_b32 s{sT0}, s2, 7')
    g(f's_lshr_b32 s{sT1}, s2, 5')
    g(f's_lshl_b32 s{sT1}, s{sT1}, 3')
    g(f's_add_u32 s{sT0}, s{sT0}, s{sT1}')
    g(f's_lshl_b32 s{sHoff}, s{sT0}, 16')
    g(f's_lshr_b32 s{sT1}, s2, 3')
    g(f's_and_b32 s{sT1}, s{sT1}, 3')
    g(f's_lshl_b32 s{sT1}, s{sT1}, 14')
    g(f's_lshl_b32 s{sT0}, s{sWave}, 11')
    g(f's_add_u32 s{sQoff}, s{sHoff}, s{sT1}')
    g(f's_add_u32 s{sQoff}, s{sQoff}, s{sT0}')
    g(f's_lshr_b32 s{sT0}, s{sWave}, 2')
    g(f's_lshl_b32 s{sT0}, s{sT0}, 1')
    g(f's_and_b32 s{sT1}, s{sWave}, 1')
    g(f's_add_u32 s{sT0}, s{sT0}, s{sT1}')
    g(f's_lshl_b32 s{sT0}, s{sT0}, 10')
    g(f's_add_u32 s{sDoff}, s{sHoff}, s{sT0}')
    g(f's_and_b32 s{sT1}, s{sWave}, 2')
    g(f's_lshl_b32 s{sT1}, s{sT1}, 15')
    g(f's_add_u32 m0, s{sT0}, s{sT1}')
    g(f's_mov_b32 s{SRD_Q+2}, 0x400000')
    g(f's_mov_b32 s{SRD_Q+3}, 0x20000')
    g(f's_mov_b32 s{SRD_K+2}, 0x400000')
    g(f's_mov_b32 s{SRD_K+3}, 0x20000')
    g(f's_mov_b32 s{SRD_KV+2}, 0x400000')
    g(f's_mov_b32 s{SRD_KV+3}, 0x20000')
    g(f's_cmp_eq_u32 s{sT1}, 0')
    g(f's_cselect_b64 vcc, -1, 0')
    g(f'v_cndmask_b32 v{vDma}, v{vLin}, v{vPat}, vcc')
    g('s_waitcnt lgkmcnt(0)')
    g(f's_mov_b32 s{SRD_Q}, s{sQ}')
    g(f's_and_b32 s{SRD_Q+1}, s{sQ+1}, 0xffff')
    g(f'buffer_load_dwordx4 {vr(QX,4)}, v{vPat}, s[{SRD_Q}:{SRD_Q+3}], s{sQoff} offen')
    g(f's_mov_b32 s{SRD_K}, s{sK}')
    g(f's_and_b32 s{SRD_K+1}, s{sK+1}, 0xffff')
    g(f'buffer_load_dwordx4 {vr(KB[0],4)}, v{vPat}, s[{SRD_K}:{SRD_K+3}], s{sHoff} offen')
    g(f'buffer_load_dwordx4 {vr(QY,4)}, v{vPat}, s[{SRD_Q}:{SRD_Q+3}], s{sQoff} offen offset:1024')
    g(f's_cmp_eq_u32 s{sT1}, 0')
    g(f's_cselect_b64 s[{SRD_KV}:{SRD_KV+1}], s[{sK}:{sK+1}], s[{sV}:{sV+1}]')
    g(f's_and_b32 s{SRD_KV+1}, s{SRD_KV+1}, 0xffff')
    def dma(off=0):
        return f'buffer_load_dwordx4 v{vDma}, s[{SRD_KV}:{SRD_KV+3}], s{sDoff} offen' + (f' offset:{off}' if off else '') + ' lds'
    NPRE = 4
    for r in range(NPRE):
        g(dma())
        if r < NPRE - 1:
            g(f's_add_u32 m0, m0, 0x1000')
            g(f's_add_u32 s{sDoff}, s{sDoff}, 0x1000')
    g(f's_and_b32 s{sT0}, s{sWave}, 1')
    g(f's_lshl_b32 s{sT0}, s{sT0}, 12')
    g(f's_add_u32 s{sT0}, s{sT0}, 0x4000')
    g(f's_add_u32 s{sDoff}, s{sHoff}, s{sT0}')
    g(f's_add_u32 m0, s{sT0}, s{sT1}')
    g(f's_mov_b32 s{SRD_O}, s{sO}')
    g(f's_and_b32 s{SRD_O+1}, s{sO+1}, 0xffff')
    g(f's_mov_b32 s{SRD_O+2}, 0x400000')
    g(f's_mov_b32 s{SRD_O+3}, 0x20000')
    g(f's_mov_b32 s{sC}, 0x{C:08x}')
    g(f's_mov_b32 s{sC+1}, 0x{C:08x}')
    g(f's_mov_b32 s{sFlag}, 0')
    g(f'v_bfe_u32 v{vT0}, v{vT1}, 2, 2')
    g(f'v_lshl_add_u32 v{vT0}, v{vT3}, 3, v{vT0}')
    g(f'v_lshlrev_b32 v{vT0}, 5, v{vT0}')
    g(f'v_and_b32 v{vT2}, 1, v{vT1}')
    g(f'v_lshl_add_u32 v{vT0}, v{vT2}, 4, v{vT0}')
    g(f'v_bfe_u32 v{vT2}, v{vT1}, 1, 1')
    g(f'v_lshl_add_u32 v{vT0}, v{vT2}, 3, v{vT0}')
    g(f'v_add_u32 v{vT0}, {LDS_V}, v{vT0}')
    g(f'v_lshlrev_b32 v{vT2}, 3, v{vT2}')
    g(f'v_add_u32 v{vT2}, {LDS_ONES+128}, v{vT2}')
    g(f'v_and_b32 v{vT3}, 16, v{vT1}')
    g(f'v_cmp_eq_u32 vcc, 0, v{vT3}')
    g(f'v_mov_b32 v{vT3}, 8192')
    g(f'v_mov_b32 v{vIdx}, 0xdddddddd')
    g(f'v_cndmask_b32 v{vVA0}, v{vT2}, v{vT0}, vcc')
    g(f'v_cndmask_b32 v{vVI}, 0, v{vT3}, vcc')
    g(f'v_mov_b32 v{vKA}, v{vLin}')
    g(f'v_mov_b32 v{vVA}, v{vVA0}')
    for i in range(16):
        g(f'v_mov_b64 {vr(OX+2*i,2)}, 0')
    g(f's_cmp_lt_u32 s{sWave}, 4')
    g('s_cbranch_scc1 L_leadA')
    if prio: g('s_setprio 1')
    g(f's_cmp_lg_u32 s{sWave}, 7')
    g('s_cbranch_scc1 L_noones')
    g(f'v_lshlrev_b32 v{vT2}, 7, v{vT1}')
    g(f'v_add_u32 v{vT2}, {LDS_ONES}, v{vT2}')
    g(f'v_mov_b32 v{SX}, 0x3f80')
    g(f'v_mov_b32 v{SX+1}, 0')
    g(f'v_mov_b32 v{SX+2}, 0')
    g(f'v_mov_b32 v{SX+3}, 0')
    g(f'ds_write_b128 v{vT2}, {vr(SX,4)}')
    g.label('L_noones')
    g(f's_waitcnt vmcnt({NPRE-1}) lgkmcnt(0)')
    g('s_barrier')
    g('s_branch L_q')
    g.label('L_leadA')
    if prio: g('s_setprio 2')
    g.label('L_q')
    def scaleq(Q, T):
        for r in range(4):
            q = Q + r
            g(f'v_lshlrev_b32 v{T+2*r}, 16, v{q}')
            g(f'v_and_b32 v{T+2*r+1}, 0xffff0000, v{q}')
        for r in range(4):
            g(f'v_pk_mul_f32 {vr(T+2*r,2)}, {vr(T+2*r,2)}, s[{sC}:{sC+1}]')
        for r in range(4):
            g(f'v_cvt_pk_bf16_f32 v{Q+r}, v{T+2*r}, v{T+2*r+1}')
    def rowmax(S, M, T, Cc):
        g(f'v_max3_f32 v{M}, v{S}, v{S+1}, v{S+2}')
        for i in range(6):
            g(f'v_max3_f32 v{M}, v{S+3+2*i}, v{S+4+2*i}, v{M}')
        g(f'v_max_f32 v{M}, v{S+15}, v{M}')
        g(f'v_mov_b32 v{T}, v{M}')
        g('s_nop 1')
        g(f'v_permlane32_swap_b32 v{M}, v{T}')
        g('s_nop 1')
        g(f'v_min_f32_e64 v{Cc}, -v{M}, -v{T}')
        g(f'v_min_f32_e64 v{Cc+1}, -v{M}, -v{T}')
        for i in range(1, 8):
            g(f'v_mov_b64 {vr(Cc+2*i,2)}, {vr(Cc,2)}')
    g(f's_waitcnt vmcnt({NPRE+1})')
    stamp()
    g.c('scale Q by softmax_scale*log2(e); stand-in max = row max over the first 32 keys')
    scaleq(QX, CX)
    g(f's_waitcnt vmcnt({NPRE})')
    g('s_nop 0')
    g(f'v_mfma_f32_32x32x16_bf16 {vr(SX,16)}, {vr(KB[0],4)}, {vr(QX,4)}, 0')
    scaleq(QY, CY)
    g('s_nop 1')
    g(f'v_mfma_f32_32x32x16_bf16 {vr(SY,16)}, {vr(KB[0],4)}, {vr(QY,4)}, 0')
    rowmax(SX, vMX, vT0, CX)
    g(f's_cmp_lt_u32 s{sWave}, 4')
    g('s_nop 0')
    g(f'v_mfma_f32_32x32x16_bf16 {vr(SX,16)}, {vr(KB[0],4)}, {vr(QX,4)}, {vr(CX,16)}')
    g('s_cbranch_scc0 L_nobar')
    g(f's_waitcnt vmcnt({NPRE-1})')
    g('s_barrier')
    g.label('L_nobar')
    stamp()
    for k in range(4):
        g(f'ds_read_b64_tr_b16 {vr(VB[0]+2*k,2)}, v{vVA} offset:{VO[k]}')
    rowmax(SY, vMY, vT1, CY)
    stamp()
    g('s_cbranch_scc0 L_mainB')

    def koff(tau):
        return (tau % 8) * 1024 if loop else tau * 1024
    def phase(p, extra=None):
        extra = extra or {}
        t = p // 2
        isX = (p % 2 == 0)
        b = t % 2; nb = 1 - b
        last = (t == 63)
        vo = ((t + 1) % 8) * 1024
        rdV = lambda k: f'ds_read_b64_tr_b16 {vr(VB[nb]+2*k,2)}, v{vVA} offset:{vo+VO[k]}'
        sl = {'a0': [], 'a1': [], 'a2': []}
        if isX:
            S, Sp, O, Op, Cp, Qp, Kq = SX, SY, OX, OY, CY, QY, KB[b]
            H = VB[nb] + 4 if t > 0 else None
            sl['a0'] = ['s_waitcnt lgkmcnt(2)']
            if not last:
                sl['a0'] += [f'ds_read_b128 {vr(KB[nb],4)}, v{vKA} offset:{koff(t+1)}']
                sl['a1'] = [rdV(0)]
                sl['a2'] = ['s_waitcnt lgkmcnt(2)', rdV(1)]
            else:
                sl['a2'] = ['s_waitcnt lgkmcnt(0)']
        else:
            S, Sp, O, Op, Cp, Qp, Kq = SY, SX, OY, OX, CX, QX, (KB[nb] if not last else None)
            H = VB[b] + 4
            if not last:
                sl['a0'] = ['s_waitcnt lgkmcnt(2)', rdV(2)]
                sl['a1'] = [rdV(3)]
                if (t + 2) % 8 == 0 and t + 2 < 64:
                    sl['a2'] = [f'v_add_u32 v{vVA}, v{vVI}, v{vVA}']
                    if loop: sl['a2'] += [f'v_add_u32 v{vKA}, 8192, v{vKA}']
        L = VB[b]
        for k, v in extra.items():
            if k.endswith('pre'): sl[k[:2]] = v + sl[k[:2]]
            else: sl[k] = sl.get(k, []) + v
        g.c(f'{"X" if isX else "Y"} phase, tile {t}')
        for i in range(16):
            g(f'v_exp_f32 v{S+i}, v{S+i}')
            if i == 1:
                if H is not None:
                    g(f'v_smfmac_f32_32x32x32_bf16 {vr(Op,16)}, {vr(H,4)}, {vr(Sp+8,8)}, v{vIdx}')
                for s in sl['a0']: g(s)
            if i == qkpos:
                if Kq is not None:
                    g(f'v_mfma_f32_32x32x16_bf16 {vr(Sp,16)}, {vr(Kq,4)}, {vr(Qp,4)}, {vr(Cp,16)}')
                for s in sl['a1']: g(s)
            if i == sp1pos:
                g(f'v_smfmac_f32_32x32x32_bf16 {vr(O,16)}, {vr(L,4)}, {vr(S,8)}, v{vIdx}')
                for s in sl['a2']: g(s)
            for s in sl.get(i, []): g(s)

    iB, iC = nst[0], nst[0] + 1
    if stamps: nst[0] += 2
    nd = 0
    for p in range(32):
        ex = {}
        a2 = []
        if p == 5:
            a2 += [f's_waitcnt vmcnt({nd})', 's_barrier'] + stamp_s(idx=iB)
        if p == 29:
            assert nd == 24
            a2 += ['s_waitcnt vmcnt(0)', 's_barrier'] + stamp_s(idx=iC)
        if p % 2 == 1:
            for _ in range(dper):
                if nd < 24:
                    a2.append(dma((nd % 4) * 1024))
                    nd += 1
                    if nd % 4 == 0 and nd < 24:
                        a2 += ['s_add_u32 m0, m0, 0x2000', f's_add_u32 s{sDoff}, s{sDoff}, 0x2000']
        if loop and p == 31:
            a2.append(f's_mov_b32 s{sCnt}, {(48-tail)//8}')
        ex['a2'] = a2
        phase(p, ex)
    g.label('L_shared')
    if loop:
        g.label('L_loop')
        for p in range(32, 48):
            ex = {}
            if p == 47:
                ex['a2'] = [f's_sub_u32 s{sCnt}, s{sCnt}, 1', f's_cmp_lg_u32 s{sCnt}, 0']
            phase(p, ex)
        g('s_cbranch_scc1 L_loop')
        rest = range(128 - 2*tail, 128)
    else:
        rest = range(32, 128)
    for p in rest:
        ex = {}
        if prio and p == 128 - x:
            ex['a1'] = ['s_setprio 0']
        phase(p, ex)

    stamp()
    g('s_nop 0')
    g(f'v_smfmac_f32_32x32x32_bf16 {vr(OY,16)}, {vr(VB[1]+4,4)}, {vr(SY+8,8)}, v{vIdx}')
    g.label('L_epi')
    g(f'v_mov_b32 v{vT2}, 0x5d800000')
    def chk(O, T):
        g(f'v_pk_add_f32 {vr(T,2)}, {vr(O,2)}, {vr(O+2,2)}')
        g(f'v_pk_add_f32 {vr(T+2,2)}, {vr(O+4,2)}, {vr(O+6,2)}')
        g(f'v_pk_add_f32 {vr(T,2)}, {vr(T,2)}, {vr(T+2,2)}')
        g(f'v_add_f32 v{T}, v{T}, v{T+1}')
        g(f'v_fma_f32 v{T}, v{T}, 0, v{O+8}')
    def fin(O, M, P):
        for i in range(8):
            g(f'v_mul_f32 v{O+i}, v{O+i}, v{M}')
        for i in range(4):
            g(f'v_cvt_pk_bf16_f32 v{P+i}, v{O+2*i}, v{O+2*i+1}')
    g(f'v_rcp_f32 v{vMX}, v{OX+8}')
    chk(OX, SX)
    g(f'v_cmp_nlt_f32 s[{sT0}:{sT0+1}], v{SX}, v{vT2}')
    fin(OX, vMX, SX+4)
    g(f'v_rcp_f32 v{vMY}, v{OY+8}')
    chk(OY, SX+8)
    g(f'v_cmp_nlt_f32 vcc, v{SX+8}, v{vT2}')
    fin(OY, vMY, SX+12)
    g(f's_or_b64 s[{sT0}:{sT0+1}], s[{sT0}:{sT0+1}], vcc')
    g('s_cbranch_scc1 L_redo')
    g.label('L_store')
    g(f'buffer_store_dwordx4 {vr(SX+4,4)}, v{vPat}, s[{SRD_O}:{SRD_O+3}], s{sQoff} offen')
    g(f'buffer_store_dwordx4 {vr(SX+12,4)}, v{vPat}, s[{SRD_O}:{SRD_O+3}], s{sQoff} offen offset:1024')
    if stamps:
        g('s_waitcnt vmcnt(0)')
        stamp(); stamp(True)
        g('s_waitcnt lgkmcnt(0)')
        g(f's_mov_b32 s12, s{sWs}'); g(f's_and_b32 s13, s{sWs+1}, 0xffff'); g('s_mov_b32 s14, 0x1000000'); g('s_mov_b32 s15, 0x20000')
        g(f's_lshl_b32 s32, s2, 3'); g(f's_add_u32 s32, s32, s{sWave}'); g('s_lshl_b32 s32, s32, 6')
        g('s_mov_b64 exec, 1')
        g('v_mov_b32 v0, 0')
        for i in range(nst[0]):
            g(f'v_mov_b32 v1, s{40+2*i}')
            g(f'buffer_store_dword v1, v0, s[12:15], s32 offen offset:{4*i}')
        g('s_getreg_b32 s33, hwreg(HW_REG_XCC_ID)')
        g('v_mov_b32 v1, s33')
        g(f'buffer_store_dword v1, v0, s[12:15], s32 offen offset:{4*15}')
        g('s_getreg_b32 s33, hwreg(HW_REG_HW_ID)')
        g('v_mov_b32 v1, s33')
        g(f'buffer_store_dword v1, v0, s[12:15], s32 offen offset:{4*14}')
    g.label('L_end')
    g('s_endpgm')

    g.label('L_mainB')
    for p in range(32):
        ex = {}
        a2 = []
        if p == bB:
            a2 += ['s_waitcnt vmcnt(0)', 's_barrier'] + stamp_s(idx=iB)
        if p == bC:
            a2 += ['s_barrier'] + stamp_s(idx=iC)
        if loop and p == 31:
            a2.append(f's_mov_b32 s{sCnt}, {(48-tail)//8}')
        ex['a2'] = a2
        phase(p, ex)
    g('s_branch L_shared')

    g.label('L_redo')
    g(f's_cmp_lg_u32 s{sFlag}, 0')
    g('s_cbranch_scc1 L_store')
    g(f's_mov_b32 s{sFlag}, 1')
    g(f's_mov_b32 s{sCnt}, 64')
    g(f'v_mov_b32 v{vKA}, v{vLin}')
    g(f'v_mov_b32 v{vMX}, 0xff800000')
    g(f'v_mov_b32 v{vMY}, 0xff800000')
    g.label('L_maxloop')
    g(f'ds_read_b128 {vr(KB[0],4)}, v{vKA}')
    g(f'v_add_u32 v{vKA}, 1024, v{vKA}')
    g(f's_sub_u32 s{sCnt}, s{sCnt}, 1')
    g('s_waitcnt lgkmcnt(0)')
    g(f'v_mfma_f32_32x32x16_bf16 {vr(SX,16)}, {vr(KB[0],4)}, {vr(QX,4)}, 0')
    g(f'v_mfma_f32_32x32x16_bf16 {vr(SY,16)}, {vr(KB[0],4)}, {vr(QY,4)}, 0')
    g('s_nop 11')
    for i in range(8):
        g(f'v_max3_f32 v{vMX}, v{SX+2*i}, v{SX+2*i+1}, v{vMX}')
    g('s_nop 3')
    for i in range(8):
        g(f'v_max3_f32 v{vMY}, v{SY+2*i}, v{SY+2*i+1}, v{vMY}')
    g(f's_cmp_lg_u32 s{sCnt}, 0')
    g('s_cbranch_scc1 L_maxloop')
    g(f'v_mov_b32 v{vT0}, v{vMX}')
    g(f'v_mov_b32 v{vT1}, v{vMY}')
    g(f'v_mov_b32 v{vKA}, v{vLin}')
    g(f'v_mov_b32 v{vVA}, v{vVA0}')
    g(f'v_permlane32_swap_b32 v{vMX}, v{vT0}')
    g(f'v_permlane32_swap_b32 v{vMY}, v{vT1}')
    g(f'v_lshrrev_b32 v{vVI}, 3, v{vVI}')
    g(f'v_mov_b32 v{vT2}, 0x41300000')
    g(f'v_max_f32 v{vMX}, v{vMX}, v{vT0}')
    g(f'v_max_f32 v{vMY}, v{vMY}, v{vT1}')
    g(f'v_add_f32 v{vMX}, v{vT2}, v{vMX}')
    g(f'v_add_f32 v{vMY}, v{vT2}, v{vMY}')
    for i in range(16):
        g(f'v_sub_f32 v{CX+i}, 0, v{vMX}')
        g(f'v_sub_f32 v{CY+i}, 0, v{vMY}')
        g(f'v_mov_b64 {vr(OX+2*i,2)}, 0')
    g(f's_mov_b32 s{sCnt}, 64')
    g.label('L_slow')
    g(f'ds_read_b128 {vr(KB[0],4)}, v{vKA}')
    for k in range(4):
        g(f'ds_read_b64_tr_b16 {vr(VB[0]+2*k,2)}, v{vVA} offset:{VO[k]}')
    g(f'v_add_u32 v{vKA}, 1024, v{vKA}')
    g(f'v_add_u32 v{vVA}, v{vVI}, v{vVA}')
    g(f's_sub_u32 s{sCnt}, s{sCnt}, 1')
    g('s_waitcnt lgkmcnt(0)')
    g(f'v_mfma_f32_32x32x16_bf16 {vr(SX,16)}, {vr(KB[0],4)}, {vr(QX,4)}, {vr(CX,16)}')
    g(f'v_mfma_f32_32x32x16_bf16 {vr(SY,16)}, {vr(KB[0],4)}, {vr(QY,4)}, {vr(CY,16)}')
    g('s_nop 11')
    for i in range(32):
        g(f'v_exp_f32 v{SX+i}, v{SX+i}')
    g('s_nop 1')
    g(f'v_smfmac_f32_32x32x32_bf16 {vr(OX,16)}, {vr(VB[0],4)}, {vr(SX,8)}, v{vIdx}')
    g(f'v_smfmac_f32_32x32x32_bf16 {vr(OY,16)}, {vr(VB[0],4)}, {vr(SY,8)}, v{vIdx}')
    g(f'v_smfmac_f32_32x32x32_bf16 {vr(OX,16)}, {vr(VB[0]+4,4)}, {vr(SX+8,8)}, v{vIdx}')
    g(f'v_smfmac_f32_32x32x32_bf16 {vr(OY,16)}, {vr(VB[0]+4,4)}, {vr(SY+8,8)}, v{vIdx}')
    g('s_nop 15')
    g(f's_cmp_lg_u32 s{sCnt}, 0')
    g('s_cbranch_scc1 L_slow')
    g('s_branch L_epi')

    g.raw('.section .rodata,"a"')
    g.raw('.p2align 6')
    g.raw(f'.amdhsa_kernel {NAME}_kernel')
    g.raw(f'  .amdhsa_next_free_vgpr {NV}')
    g.raw(f'  .amdhsa_next_free_sgpr {80 if stamps else 40}')
    g.raw(f'  .amdhsa_accum_offset {(NV+3)//4*4}')
    g.raw('  .amdhsa_group_segment_fixed_size 0')
    g.raw('  .amdhsa_kernarg_size 48')
    g.raw('  .amdhsa_user_sgpr_count 2')
    g.raw('  .amdhsa_user_sgpr_kernarg_segment_ptr 1')
    g.raw('  .amdhsa_system_sgpr_workgroup_id_x 1')
    g.raw('.end_amdhsa_kernel')
    return '\n'.join(g.lines) + '\n'

if __name__ == '__main__':
    out = sys.argv[1] if len(sys.argv) > 1 else f'cdna_kernels/{NAME}.s'
    kw = dict(a.split('=') for a in sys.argv[2:])
    kw = {k: int(v) for k, v in kw.items()}
    open(out, 'w').write(build(**kw))
```

```python
import struct, sys, math

NAME = 'standalone__fused_io_aware_attn__prompt'
def f32(x):
    return struct.unpack('<I', struct.pack('<f', x))[0]

HEADER = '''; Kernarg layout for this problem (48 bytes, ptrs only, base s[0:1]):
'''

class Gen:
    def __init__(self):
        self.lines = []
    def __call__(self, s):
        self.lines.append('    ' + s)
    def label(self, s):
        self.lines.append(s + ':')
    def c(self, s):
        self.lines.append('    ; ' + s)
    def raw(self, s):
        self.lines.append(s)

def vr(base, n):
    return f'v[{base}:{base+n-1}]'

def build(loop=0, x=16, bB=0, bC=5, dper=2, stamps=0, prio=1, tail=16, qkpos=4, sp1pos=10, st=0):
    g = Gen()
    nst = [0]
    def stamp_s(real=False, idx=None):
        if not stamps: return []
        if idx is None:
            idx = nst[0]; nst[0] += 1
        return [f's_mem{"real" if real else ""}time s[{40+2*idx}:{41+2*idx}]']
    def stamp(real=False, idx=None):
        for s in stamp_s(real, idx): g(s)

    SX, SY = 0, 16
    OX, OY = 32, 48
    CX, CY = 64, 80
    QX, QY = 96, 100
    KB = [104, 108]
    VB = [112, 120]
    vKA, vVA, vVI = 128, 129, 130
    vPat, vDma = 131, 132
    vIdx = 133
    vT0, vT1, vT2, vT3 = 134, 135, 136, 137
    vMX, vMY = 138, 139
    vVA0, vLin = 140, 141
    NV = 142
    sQ, sK, sV, sO = 4, 6, 8, 10
    SRD_Q, SRD_KV, SRD_O, SRD_K = 12, 16, 20, 24
    sWave, sHoff, sQoff, sDoff = 28, 29, 30, 31
    sC = 32
    sT0, sT1 = 34, 35
    sCnt, sFlag = 36, 37
    sWs = 38
    LDS_V = 65536
    LDS_ONES = 131072
    LDS_TOTAL = 131072 + 8192
    STM = ['', ' nt', ' sc1', ' sc0 sc1', ' sc0 sc1 nt'][st]
    VO = [0, 128, 512, 640]
    C = f32(0.25 * math.log2(math.e))

    g.raw(HEADER + f'; @launch grid=(256,1,1) block=(512,1,1) lds={LDS_TOTAL}')
    g.raw('.amdgcn_target "amdgcn-amd-amdhsa--gfx950"')
    g.raw('.text')
    g.raw(f'.globl {NAME}_kernel')
    g.raw('.p2align 8')
    g.raw(f'.type {NAME}_kernel,@function')
    g.label(f'{NAME}_kernel')
    g('s_cmp_ge_u32 s2, 256')
    g('s_cbranch_scc1 L_end')
    g('s_load_dwordx8 s[4:11], s[0:1], 0')
    stamp(True); stamp()
    if stamps: g(f's_load_dwordx2 s[{sWs}:{sWs+1}], s[0:1], 40')
    g(f'v_lshrrev_b32 v{vT0}, 6, v0')
    g(f'v_and_b32 v{vT1}, 63, v0')
    g(f'v_readfirstlane_b32 s{sWave}, v{vT0}')
    g(f'v_lshlrev_b32 v{vLin}, 4, v{vT1}')
    g(f'v_and_b32 v{vT2}, 31, v{vT1}')
    g(f'v_lshlrev_b32 v{vT2}, 5, v{vT2}')
    g(f'v_lshrrev_b32 v{vT3}, 5, v{vT1}')
    g(f'v_lshl_add_u32 v{vPat}, v{vT3}, 4, v{vT2}')
    g(f's_and_b32 s{sT0}, s2, 7')
    g(f's_lshr_b32 s{sT1}, s2, 5')
    g(f's_lshl_b32 s{sT1}, s{sT1}, 3')
    g(f's_add_u32 s{sT0}, s{sT0}, s{sT1}')
    g(f's_lshl_b32 s{sHoff}, s{sT0}, 16')
    g(f's_lshr_b32 s{sT1}, s2, 3')
    g(f's_and_b32 s{sT1}, s{sT1}, 3')
    g(f's_lshl_b32 s{sT1}, s{sT1}, 14')
    g(f's_lshl_b32 s{sT0}, s{sWave}, 11')
    g(f's_add_u32 s{sQoff}, s{sHoff}, s{sT1}')
    g(f's_add_u32 s{sQoff}, s{sQoff}, s{sT0}')
    g(f's_lshr_b32 s{sT0}, s{sWave}, 2')
    g(f's_lshl_b32 s{sT0}, s{sT0}, 1')
    g(f's_and_b32 s{sT1}, s{sWave}, 1')
    g(f's_add_u32 s{sT0}, s{sT0}, s{sT1}')
    g(f's_lshl_b32 s{sT0}, s{sT0}, 10')
    g(f's_add_u32 s{sDoff}, s{sHoff}, s{sT0}')
    g(f's_and_b32 s{sT1}, s{sWave}, 2')
    g(f's_lshl_b32 s{sT1}, s{sT1}, 15')
    g(f's_add_u32 m0, s{sT0}, s{sT1}')
    g(f's_mov_b32 s{SRD_Q+2}, 0x400000')
    g(f's_mov_b32 s{SRD_Q+3}, 0x20000')
    g(f's_mov_b32 s{SRD_K+2}, 0x400000')
    g(f's_mov_b32 s{SRD_K+3}, 0x20000')
    g(f's_mov_b32 s{SRD_KV+2}, 0x400000')
    g(f's_mov_b32 s{SRD_KV+3}, 0x20000')
    g(f's_cmp_eq_u32 s{sT1}, 0')
    g(f's_cselect_b64 vcc, -1, 0')
    g(f'v_cndmask_b32 v{vDma}, v{vLin}, v{vPat}, vcc')
    g('s_waitcnt lgkmcnt(0)')
    g(f's_mov_b32 s{SRD_Q}, s{sQ}')
    g(f's_and_b32 s{SRD_Q+1}, s{sQ+1}, 0xffff')
    g(f'buffer_load_dwordx4 {vr(QX,4)}, v{vPat}, s[{SRD_Q}:{SRD_Q+3}], s{sQoff} offen')
    g(f's_mov_b32 s{SRD_K}, s{sK}')
    g(f's_and_b32 s{SRD_K+1}, s{sK+1}, 0xffff')
    g(f'buffer_load_dwordx4 {vr(KB[0],4)}, v{vPat}, s[{SRD_K}:{SRD_K+3}], s{sHoff} offen')
    g(f'buffer_load_dwordx4 {vr(QY,4)}, v{vPat}, s[{SRD_Q}:{SRD_Q+3}], s{sQoff} offen offset:1024')
    g(f's_cmp_eq_u32 s{sT1}, 0')
    g(f's_cselect_b64 s[{SRD_KV}:{SRD_KV+1}], s[{sK}:{sK+1}], s[{sV}:{sV+1}]')
    g(f's_and_b32 s{SRD_KV+1}, s{SRD_KV+1}, 0xffff')
    def dma(off=0):
        return f'buffer_load_dwordx4 v{vDma}, s[{SRD_KV}:{SRD_KV+3}], s{sDoff} offen' + (f' offset:{off}' if off else '') + ' lds'
    NPRE = 4
    for r in range(NPRE):
        g(dma())
        if r < NPRE - 1:
            g(f's_add_u32 m0, m0, 0x1000')
            g(f's_add_u32 s{sDoff}, s{sDoff}, 0x1000')
    g(f's_and_b32 s{sT0}, s{sWave}, 1')
    g(f's_lshl_b32 s{sT0}, s{sT0}, 12')
    g(f's_add_u32 s{sT0}, s{sT0}, 0x4000')
    g(f's_add_u32 s{sDoff}, s{sHoff}, s{sT0}')
    g(f's_add_u32 m0, s{sT0}, s{sT1}')
    g(f's_mov_b32 s{SRD_O}, s{sO}')
    g(f's_and_b32 s{SRD_O+1}, s{sO+1}, 0xffff')
    g(f's_mov_b32 s{SRD_O+2}, 0x400000')
    g(f's_mov_b32 s{SRD_O+3}, 0x20000')
    g(f's_mov_b32 s{sC}, 0x{C:08x}')
    g(f's_mov_b32 s{sC+1}, 0x{C:08x}')
    g(f's_mov_b32 s{sFlag}, 0')
    g(f'v_bfe_u32 v{vT0}, v{vT1}, 2, 2')
    g(f'v_lshl_add_u32 v{vT0}, v{vT3}, 3, v{vT0}')
    g(f'v_lshlrev_b32 v{vT0}, 5, v{vT0}')
    g(f'v_and_b32 v{vT2}, 1, v{vT1}')
    g(f'v_lshl_add_u32 v{vT0}, v{vT2}, 4, v{vT0}')
    g(f'v_bfe_u32 v{vT2}, v{vT1}, 1, 1')
    g(f'v_lshl_add_u32 v{vT0}, v{vT2}, 3, v{vT0}')
    g(f'v_add_u32 v{vT0}, {LDS_V}, v{vT0}')
    g(f'v_lshlrev_b32 v{vT2}, 3, v{vT2}')
    g(f'v_add_u32 v{vT2}, {LDS_ONES+128}, v{vT2}')
    g(f'v_and_b32 v{vT3}, 16, v{vT1}')
    g(f'v_cmp_eq_u32 vcc, 0, v{vT3}')
    g(f'v_mov_b32 v{vT3}, 8192')
    g(f'v_mov_b32 v{vIdx}, 0xdddddddd')
    g(f'v_cndmask_b32 v{vVA0}, v{vT2}, v{vT0}, vcc')
    g(f'v_cndmask_b32 v{vVI}, 0, v{vT3}, vcc')
    g(f'v_mov_b32 v{vKA}, v{vLin}')
    g(f'v_mov_b32 v{vVA}, v{vVA0}')
    for i in range(16):
        g(f'v_mov_b64 {vr(OX+2*i,2)}, 0')
    g(f's_cmp_lt_u32 s{sWave}, 4')
    g('s_cbranch_scc1 L_leadA')
    if prio: g('s_setprio 1')
    g(f's_cmp_lg_u32 s{sWave}, 7')
    g('s_cbranch_scc1 L_noones')
    g(f'v_lshlrev_b32 v{vT2}, 7, v{vT1}')
    g(f'v_add_u32 v{vT2}, {LDS_ONES}, v{vT2}')
    g(f'v_mov_b32 v{SX}, 0x3f80')
    g(f'v_mov_b32 v{SX+1}, 0')
    g(f'v_mov_b32 v{SX+2}, 0')
    g(f'v_mov_b32 v{SX+3}, 0')
    g(f'ds_write_b128 v{vT2}, {vr(SX,4)}')
    g.label('L_noones')
    g(f's_waitcnt vmcnt({NPRE-1}) lgkmcnt(0)')
    g('s_barrier')
    g('s_branch L_q')
    g.label('L_leadA')
    if prio: g('s_setprio 2')
    g.label('L_q')
    def scaleq(Q, T):
        for r in range(4):
            q = Q + r
            g(f'v_lshlrev_b32 v{T+2*r}, 16, v{q}')
            g(f'v_and_b32 v{T+2*r+1}, 0xffff0000, v{q}')
        for r in range(4):
            g(f'v_pk_mul_f32 {vr(T+2*r,2)}, {vr(T+2*r,2)}, s[{sC}:{sC+1}]')
        for r in range(4):
            g(f'v_cvt_pk_bf16_f32 v{Q+r}, v{T+2*r}, v{T+2*r+1}')
    def rowmax(S, M, T, Cc):
        g(f'v_max3_f32 v{M}, v{S}, v{S+1}, v{S+2}')
        for i in range(6):
            g(f'v_max3_f32 v{M}, v{S+3+2*i}, v{S+4+2*i}, v{M}')
        g(f'v_max_f32 v{M}, v{S+15}, v{M}')
        g(f'v_mov_b32 v{T}, v{M}')
        g('s_nop 1')
        g(f'v_permlane32_swap_b32 v{M}, v{T}')
        g('s_nop 1')
        g(f'v_min_f32_e64 v{Cc}, -v{M}, -v{T}')
        g(f'v_min_f32_e64 v{Cc+1}, -v{M}, -v{T}')
        for i in range(1, 8):
            g(f'v_mov_b64 {vr(Cc+2*i,2)}, {vr(Cc,2)}')
    g(f's_waitcnt vmcnt({NPRE+1})')
    stamp()
    g.c('scale Q by softmax_scale*log2(e); stand-in max = row max over the first 32 keys')
    scaleq(QX, CX)
    g(f's_waitcnt vmcnt({NPRE})')
    g('s_nop 0')
    g(f'v_mfma_f32_32x32x16_bf16 {vr(SX,16)}, {vr(KB[0],4)}, {vr(QX,4)}, 0')
    scaleq(QY, CY)
    g('s_nop 1')
    g(f'v_mfma_f32_32x32x16_bf16 {vr(SY,16)}, {vr(KB[0],4)}, {vr(QY,4)}, 0')
    rowmax(SX, vMX, vT0, CX)
    g(f's_cmp_lt_u32 s{sWave}, 4')
    g('s_nop 0')
    g(f'v_mfma_f32_32x32x16_bf16 {vr(SX,16)}, {vr(KB[0],4)}, {vr(QX,4)}, {vr(CX,16)}')
    g('s_cbranch_scc0 L_nobar')
    g(f's_waitcnt vmcnt({NPRE-1})')
    g('s_barrier')
    g.label('L_nobar')
    stamp()
    for k in range(4):
        g(f'ds_read_b64_tr_b16 {vr(VB[0]+2*k,2)}, v{vVA} offset:{VO[k]}')
    rowmax(SY, vMY, vT1, CY)
    stamp()
    g('s_cbranch_scc0 L_mainB')

    def koff(tau):
        return (tau % 8) * 1024 if loop else tau * 1024
    def phase(p, extra=None):
        extra = extra or {}
        t = p // 2
        isX = (p % 2 == 0)
        b = t % 2; nb = 1 - b
        last = (t == 63)
        vo = ((t + 1) % 8) * 1024
        rdV = lambda k: f'ds_read_b64_tr_b16 {vr(VB[nb]+2*k,2)}, v{vVA} offset:{vo+VO[k]}'
        sl = {'a0': [], 'a1': [], 'a2': []}
        if isX:
            S, Sp, O, Op, Cp, Qp, Kq = SX, SY, OX, OY, CY, QY, KB[b]
            H = VB[nb] + 4 if t > 0 else None
            sl['a0'] = ['s_waitcnt lgkmcnt(2)']
            if not last:
                sl['a0'] += [f'ds_read_b128 {vr(KB[nb],4)}, v{vKA} offset:{koff(t+1)}']
                sl['a1'] = [rdV(0)]
                sl['a2'] = ['s_waitcnt lgkmcnt(2)', rdV(1)]
            else:
                sl['a2'] = ['s_waitcnt lgkmcnt(0)']
        else:
            S, Sp, O, Op, Cp, Qp, Kq = SY, SX, OY, OX, CX, QX, (KB[nb] if not last else None)
            H = VB[b] + 4
            if not last:
                sl['a0'] = ['s_waitcnt lgkmcnt(2)', rdV(2)]
                sl['a1'] = [rdV(3)]
                if (t + 2) % 8 == 0 and t + 2 < 64:
                    sl['a2'] = [f'v_add_u32 v{vVA}, v{vVI}, v{vVA}']
                    if loop: sl['a2'] += [f'v_add_u32 v{vKA}, 8192, v{vKA}']
        L = VB[b]
        for k, v in extra.items():
            if k.endswith('pre'): sl[k[:2]] = v + sl[k[:2]]
            else: sl[k] = sl.get(k, []) + v
        g.c(f'{"X" if isX else "Y"} phase, tile {t}')
        for i in range(16):
            g(f'v_exp_f32 v{S+i}, v{S+i}')
            if i == 1:
                if H is not None:
                    g(f'v_smfmac_f32_32x32x32_bf16 {vr(Op,16)}, {vr(H,4)}, {vr(Sp+8,8)}, v{vIdx}')
                for s in sl['a0']: g(s)
            if i == qkpos:
                if Kq is not None:
                    g(f'v_mfma_f32_32x32x16_bf16 {vr(Sp,16)}, {vr(Kq,4)}, {vr(Qp,4)}, {vr(Cp,16)}')
                for s in sl['a1']: g(s)
            if i == sp1pos:
                g(f'v_smfmac_f32_32x32x32_bf16 {vr(O,16)}, {vr(L,4)}, {vr(S,8)}, v{vIdx}')
                for s in sl['a2']: g(s)
            for s in sl.get(i, []): g(s)

    iB, iC = nst[0], nst[0] + 1
    if stamps: nst[0] += 2
    nd = 0
    for p in range(32):
        ex = {}
        a2 = []
        if p == 5:
            a2 += [f's_waitcnt vmcnt({nd})', 's_barrier'] + stamp_s(idx=iB)
        if p == 29:
            assert nd == 24
            a2 += ['s_waitcnt vmcnt(0)', 's_barrier'] + stamp_s(idx=iC)
        if p % 2 == 1:
            for _ in range(dper):
                if nd < 24:
                    a2.append(dma((nd % 4) * 1024))
                    nd += 1
                    if nd % 4 == 0 and nd < 24:
                        a2 += ['s_add_u32 m0, m0, 0x2000', f's_add_u32 s{sDoff}, s{sDoff}, 0x2000']
        if loop and p == 31:
            a2.append(f's_mov_b32 s{sCnt}, {(48-tail)//8}')
        ex['a2'] = a2
        phase(p, ex)
    g.label('L_shared')
    if loop:
        g.label('L_loop')
        for p in range(32, 48):
            ex = {}
            if p == 47:
                ex['a2'] = [f's_sub_u32 s{sCnt}, s{sCnt}, 1', f's_cmp_lg_u32 s{sCnt}, 0']
            phase(p, ex)
        g('s_cbranch_scc1 L_loop')
        rest = range(128 - 2*tail, 128)
    else:
        rest = range(32, 128)
    for p in rest:
        ex = {}
        if prio and p == 128 - x:
            ex['a1'] = ['s_setprio 0']
        phase(p, ex)

    stamp()
    g('s_nop 0')
    g(f'v_smfmac_f32_32x32x32_bf16 {vr(OY,16)}, {vr(VB[1]+4,4)}, {vr(SY+8,8)}, v{vIdx}')
    g.label('L_epi')
    g(f'v_mov_b32 v{vT2}, 0x5d800000')
    def chk(O, T):
        g(f'v_pk_add_f32 {vr(T,2)}, {vr(O,2)}, {vr(O+2,2)}')
        g(f'v_pk_add_f32 {vr(T+2,2)}, {vr(O+4,2)}, {vr(O+6,2)}')
        g(f'v_pk_add_f32 {vr(T,2)}, {vr(T,2)}, {vr(T+2,2)}')
        g(f'v_add_f32 v{T}, v{T}, v{T+1}')
        g(f'v_fma_f32 v{T}, v{T}, 0, v{O+8}')
    def fin(O, M, P):
        for i in range(8):
            g(f'v_mul_f32 v{O+i}, v{O+i}, v{M}')
        for i in range(4):
            g(f'v_cvt_pk_bf16_f32 v{P+i}, v{O+2*i}, v{O+2*i+1}')
    g(f'v_rcp_f32 v{vMX}, v{OX+8}')
    chk(OX, SX)
    g(f'v_cmp_nlt_f32 s[{sT0}:{sT0+1}], v{SX}, v{vT2}')
    fin(OX, vMX, SX+4)
    g(f'v_rcp_f32 v{vMY}, v{OY+8}')
    chk(OY, SX+8)
    g(f'v_cmp_nlt_f32 vcc, v{SX+8}, v{vT2}')
    fin(OY, vMY, SX+12)
    g(f's_or_b64 s[{sT0}:{sT0+1}], s[{sT0}:{sT0+1}], vcc')
    g('s_cbranch_scc1 L_redo')
    g.label('L_store')
    g(f'buffer_store_dwordx4 {vr(SX+4,4)}, v{vPat}, s[{SRD_O}:{SRD_O+3}], s{sQoff} offen{STM}')
    g(f'buffer_store_dwordx4 {vr(SX+12,4)}, v{vPat}, s[{SRD_O}:{SRD_O+3}], s{sQoff} offen offset:1024{STM}')
    if stamps:
        g('s_waitcnt vmcnt(0)')
        stamp(); stamp(True)
        g('s_waitcnt lgkmcnt(0)')
        g(f's_mov_b32 s12, s{sWs}'); g(f's_and_b32 s13, s{sWs+1}, 0xffff'); g('s_mov_b32 s14, 0x1000000'); g('s_mov_b32 s15, 0x20000')
        g(f's_lshl_b32 s32, s2, 3'); g(f's_add_u32 s32, s32, s{sWave}'); g('s_lshl_b32 s32, s32, 6')
        g('s_mov_b64 exec, 1')
        g('v_mov_b32 v0, 0')
        for i in range(nst[0]):
            g(f'v_mov_b32 v1, s{40+2*i}')
            g(f'buffer_store_dword v1, v0, s[12:15], s32 offen offset:{4*i}')
        g('s_getreg_b32 s33, hwreg(HW_REG_XCC_ID)')
        g('v_mov_b32 v1, s33')
        g(f'buffer_store_dword v1, v0, s[12:15], s32 offen offset:{4*15}')
        g('s_getreg_b32 s33, hwreg(HW_REG_HW_ID)')
        g('v_mov_b32 v1, s33')
        g(f'buffer_store_dword v1, v0, s[12:15], s32 offen offset:{4*14}')
    g.label('L_end')
    g('s_endpgm')

    g.label('L_mainB')
    for p in range(32):
        ex = {}
        a2 = []
        if p == bB:
            a2 += ['s_waitcnt vmcnt(0)', 's_barrier'] + stamp_s(idx=iB)
        if p == bC:
            a2 += ['s_barrier'] + stamp_s(idx=iC)
        if loop and p == 31:
            a2.append(f's_mov_b32 s{sCnt}, {(48-tail)//8}')
        ex['a2'] = a2
        phase(p, ex)
    g('s_branch L_shared')

    g.label('L_redo')
    g(f's_cmp_lg_u32 s{sFlag}, 0')
    g('s_cbranch_scc1 L_store')
    g(f's_mov_b32 s{sFlag}, 1')
    g(f's_mov_b32 s{sCnt}, 64')
    g(f'v_mov_b32 v{vKA}, v{vLin}')
    g(f'v_mov_b32 v{vMX}, 0xff800000')
    g(f'v_mov_b32 v{vMY}, 0xff800000')
    g.label('L_maxloop')
    g(f'ds_read_b128 {vr(KB[0],4)}, v{vKA}')
    g(f'v_add_u32 v{vKA}, 1024, v{vKA}')
    g(f's_sub_u32 s{sCnt}, s{sCnt}, 1')
    g('s_waitcnt lgkmcnt(0)')
    g(f'v_mfma_f32_32x32x16_bf16 {vr(SX,16)}, {vr(KB[0],4)}, {vr(QX,4)}, 0')
    g(f'v_mfma_f32_32x32x16_bf16 {vr(SY,16)}, {vr(KB[0],4)}, {vr(QY,4)}, 0')
    g('s_nop 11')
    for i in range(8):
        g(f'v_max3_f32 v{vMX}, v{SX+2*i}, v{SX+2*i+1}, v{vMX}')
    g('s_nop 3')
    for i in range(8):
        g(f'v_max3_f32 v{vMY}, v{SY+2*i}, v{SY+2*i+1}, v{vMY}')
    g(f's_cmp_lg_u32 s{sCnt}, 0')
    g('s_cbranch_scc1 L_maxloop')
    g(f'v_mov_b32 v{vT0}, v{vMX}')
    g(f'v_mov_b32 v{vT1}, v{vMY}')
    g(f'v_mov_b32 v{vKA}, v{vLin}')
    g(f'v_mov_b32 v{vVA}, v{vVA0}')
    g(f'v_permlane32_swap_b32 v{vMX}, v{vT0}')
    g(f'v_permlane32_swap_b32 v{vMY}, v{vT1}')
    g(f'v_lshrrev_b32 v{vVI}, 3, v{vVI}')
    g(f'v_mov_b32 v{vT2}, 0x41300000')
    g(f'v_max_f32 v{vMX}, v{vMX}, v{vT0}')
    g(f'v_max_f32 v{vMY}, v{vMY}, v{vT1}')
    g(f'v_add_f32 v{vMX}, v{vT2}, v{vMX}')
    g(f'v_add_f32 v{vMY}, v{vT2}, v{vMY}')
    for i in range(16):
        g(f'v_sub_f32 v{CX+i}, 0, v{vMX}')
        g(f'v_sub_f32 v{CY+i}, 0, v{vMY}')
        g(f'v_mov_b64 {vr(OX+2*i,2)}, 0')
    g(f's_mov_b32 s{sCnt}, 64')
    g.label('L_slow')
    g(f'ds_read_b128 {vr(KB[0],4)}, v{vKA}')
    for k in range(4):
        g(f'ds_read_b64_tr_b16 {vr(VB[0]+2*k,2)}, v{vVA} offset:{VO[k]}')
    g(f'v_add_u32 v{vKA}, 1024, v{vKA}')
    g(f'v_add_u32 v{vVA}, v{vVI}, v{vVA}')
    g(f's_sub_u32 s{sCnt}, s{sCnt}, 1')
    g('s_waitcnt lgkmcnt(0)')
    g(f'v_mfma_f32_32x32x16_bf16 {vr(SX,16)}, {vr(KB[0],4)}, {vr(QX,4)}, {vr(CX,16)}')
    g(f'v_mfma_f32_32x32x16_bf16 {vr(SY,16)}, {vr(KB[0],4)}, {vr(QY,4)}, {vr(CY,16)}')
    g('s_nop 11')
    for i in range(32):
        g(f'v_exp_f32 v{SX+i}, v{SX+i}')
    g('s_nop 1')
    g(f'v_smfmac_f32_32x32x32_bf16 {vr(OX,16)}, {vr(VB[0],4)}, {vr(SX,8)}, v{vIdx}')
    g(f'v_smfmac_f32_32x32x32_bf16 {vr(OY,16)}, {vr(VB[0],4)}, {vr(SY,8)}, v{vIdx}')
    g(f'v_smfmac_f32_32x32x32_bf16 {vr(OX,16)}, {vr(VB[0]+4,4)}, {vr(SX+8,8)}, v{vIdx}')
    g(f'v_smfmac_f32_32x32x32_bf16 {vr(OY,16)}, {vr(VB[0]+4,4)}, {vr(SY+8,8)}, v{vIdx}')
    g('s_nop 15')
    g(f's_cmp_lg_u32 s{sCnt}, 0')
    g('s_cbranch_scc1 L_slow')
    g('s_branch L_epi')

    g.raw('.section .rodata,"a"')
    g.raw('.p2align 6')
    g.raw(f'.amdhsa_kernel {NAME}_kernel')
    g.raw(f'  .amdhsa_next_free_vgpr {NV}')
    g.raw(f'  .amdhsa_next_free_sgpr {80 if stamps else 40}')
    g.raw(f'  .amdhsa_accum_offset {(NV+3)//4*4}')
    g.raw('  .amdhsa_group_segment_fixed_size 0')
    g.raw('  .amdhsa_kernarg_size 48')
    g.raw('  .amdhsa_user_sgpr_count 2')
    g.raw('  .amdhsa_user_sgpr_kernarg_segment_ptr 1')
    g.raw('  .amdhsa_system_sgpr_workgroup_id_x 1')
    g.raw('.end_amdhsa_kernel')
    return '\n'.join(g.lines) + '\n'

if __name__ == '__main__':
    out = sys.argv[1] if len(sys.argv) > 1 else f'cdna_kernels/{NAME}.s'
    kw = dict(a.split('=') for a in sys.argv[2:])
    kw = {k: int(v) for k, v in kw.items()}
    open(out, 'w').write(build(**kw))
```

```python
import struct, sys, math

NAME = 'standalone__fused_io_aware_attn__prompt'
def f32(x):
    return struct.unpack('<I', struct.pack('<f', x))[0]

HEADER = '''; Kernarg layout for this problem (48 bytes, ptrs only, base s[0:1]):
;   offset  40: d_ws      268435456 bytes workspace
'''

class Gen:
    def __init__(self):
        self.lines = []
    def __call__(self, s):
        if isinstance(s, list):
            for x in s: self(x)
        elif s.endswith(':'): self.lines.append(s)
        else: self.lines.append('    ' + s)
    def label(self, s):
        self.lines.append(s + ':')
    def c(self, s):
        self.lines.append('    ; ' + s)
    def raw(self, s):
        self.lines.append(s)

def vr(base, n):
    return f'v[{base}:{base+n-1}]'

def build(x=21, stamps=0, prio=1, qkpos=4, sp1pos=10, st=3, barpos=11,
          sched='r,S,r,r,r,O,W0,B,r,r,r,r,W3,B,q,r,r,r,r,r,r,r,r,Wq,Q', pa='5,29,61', sites='2:7,7:15', qprio=3, bias=70):
    loop = 0
    sched = sched.split(',')
    pa = [int(v) for v in pa.split(',')] if pa else []
    sites = [tuple(int(u) for u in v.split(':')) for v in sites.split(',')] if sites else []
    g = Gen()
    nst = [0]
    def stamp_s(real=False, idx=None):
        if not stamps: return []
        if idx is None:
            idx = nst[0]; nst[0] += 1
        return [f's_mem{"real" if real else ""}time s[{40+2*idx}:{41+2*idx}]']
    def stamp(real=False, idx=None):
        g(stamp_s(real, idx))

    SX, SY = 0, 16
    OX, OY = 32, 48
    CX, CY = 64, 80
    QX, QY = 96, 100
    KB = [104, 108]
    VB = [112, 120]
    vKA, vVA, vVI = 128, 129, 130
    vPat, vDma = 131, 132
    vIdx = 133
    vT0, vT1, vT2, vT3 = 134, 135, 136, 137
    vMX, vMY = 138, 140
    vVA0, vLin = 142, 143
    NV = 144
    sQ, sK, sV, sO = 4, 6, 8, 10
    SRD_Q, SRD_KV, SRD_O, SRD_K = 12, 16, 20, 24
    sWave, sHoff, sQoff, sDoff = 28, 29, 30, 31
    sC = 32
    sT0, sT1 = 34, 35
    sCnt, sFlag = 36, 37
    sBias = 3
    sWs = 38
    LDS_V = 65536
    LDS_ONES = 131072
    LDS_TOTAL = 131072 + 8192
    STM = ['', ' nt', ' sc1', ' sc0 sc1', ' sc0 sc1 nt'][st]
    VO = [0, 128, 512, 640]
    C = f32(0.25 * math.log2(math.e))

    def dma(off=0):
        return f'buffer_load_dwordx4 v{vDma}, s[{SRD_KV}:{SRD_KV+3}], s{sDoff} offen' + (f' offset:{off}' if off else '') + ' lds'
    issued = []
    guar = []
    done = [-1]
    def dround():
        r = sum(1 for u in issued if u != 'q') // 2
        g(dma()); g(dma(1024))
        issued.extend([r, r])
        if r < 15:
            g(f's_add_u32 m0, m0, 0x1000')
            g(f's_add_u32 s{sDoff}, s{sDoff}, 0x1000')
    def vm_after(tag):
        i = max(k for k, u in enumerate(issued) if u == tag)
        for u in issued[:i+1]:
            if u != 'q': done[0] = max(done[0], u)
        return len(issued) - 1 - i
    bst = [5, 6]
    def run_sched(toks):
        for tk in toks:
            if tk == 'r': dround()
            elif tk == 'q': qloads(); issued.extend(['q'] * 3)
            elif tk == 'Wq': g(f's_waitcnt vmcnt({vm_after("q")})')
            elif tk[0] == 'W': g(f's_waitcnt vmcnt({vm_after(int(tk[1:]))})' + (' lgkmcnt(0)' if not guar else ''))
            elif tk == 'B':
                if stamps == 2 and len(guar) < 2: stamp(idx=14 + len(guar))
                g('s_barrier')
                if len(guar) < 2: stamp(idx=bst[len(guar)])
                guar.append(done[0] + 1)
            elif tk == 'O':
                assert not guar
                g(f's_cmp_lg_u32 s{sWave}, 7')
                g('s_cbranch_scc1 L_noones')
                g(f'v_lshlrev_b32 v{vT2}, 7, v{vT1}')
                g(f'v_add_u32 v{vT2}, {LDS_ONES}, v{vT2}')
                g(f'v_mov_b32 v{VB[1]}, 0x3f80')
                g(f'v_mov_b32 v{VB[1]+1}, 0')
                g(f'v_mov_b32 v{VB[1]+2}, 0')
                g(f'v_mov_b32 v{VB[1]+3}, 0')
                g(f'ds_write_b128 v{vT2}, {vr(VB[1],4)}')
                g.label('L_noones')
            else: raise ValueError(tk)
    iS, iQ = sched.index('S'), sched.index('Q')
    assert iS < iQ and sched.count('r') == 16 and sched.count('q') == 1 and sched.index('O') > iS
    def qloads():
        g(f's_mov_b32 s{SRD_Q}, s{sQ}')
        g(f's_and_b32 s{SRD_Q+1}, s{sQ+1}, 0xffff')
        g(f'buffer_load_dwordx4 {vr(QX,4)}, v{vPat}, s[{SRD_Q}:{SRD_Q+3}], s{sQoff} offen')
        g(f's_mov_b32 s{SRD_K}, s{sK}')
        g(f's_and_b32 s{SRD_K+1}, s{sK+1}, 0xffff')
        g(f'buffer_load_dwordx4 {vr(KB[0],4)}, v{vPat}, s[{SRD_K}:{SRD_K+3}], s{sHoff} offen')
        g(f'buffer_load_dwordx4 {vr(QY,4)}, v{vPat}, s[{SRD_Q}:{SRD_Q+3}], s{sQoff} offen offset:1024')
    def QK(S, K, Q, Cc):
        return f'v_mfma_f32_32x32x16_bf16 {vr(S,16)}, {vr(K,4)}, {vr(Q,4)}, ' + (vr(Cc, 16) if Cc is not None else '0')
    def PV(O, V, P):
        return f'v_smfmac_f32_32x32x32_bf16 {vr(O,16)}, {vr(V,4)}, {vr(P,8)}, v{vIdx}'
    def EX(r):
        return f'v_exp_f32 v{r}, v{r}'
    def rdV(tau, k):
        return f'ds_read_b64_tr_b16 {vr(VB[tau%2]+2*k,2)}, v{vVA} offset:{(tau%8)*1024+VO[k]}'
    def rdK(tau):
        return f'ds_read_b128 {vr(KB[tau%2],4)}, v{vKA} offset:{(tau % 8) * 1024 if loop else tau * 1024}'

    g.raw(HEADER + f'; @launch grid=(256,1,1) block=(512,1,1) lds={LDS_TOTAL}')
    g.raw('.amdgcn_target "amdgcn-amd-amdhsa--gfx950"')
    g.raw('.text')
    g.raw(f'.globl {NAME}_kernel')
    g.raw('.p2align 8')
    g.raw(f'.type {NAME}_kernel,@function')
    g.label(f'{NAME}_kernel')
    g('s_load_dwordx8 s[4:11], s[0:1], 0')
    stamp(True); stamp()
    if stamps: g(f's_load_dwordx2 s[{sWs}:{sWs+1}], s[0:1], 40')
    g(f'v_lshrrev_b32 v{vT0}, 6, v0')
    g(f'v_and_b32 v{vT1}, 63, v0')
    g(f'v_readfirstlane_b32 s{sWave}, v{vT0}')
    g('s_cmp_ge_u32 s2, 256')
    g('s_cbranch_scc1 L_end')
    g(f'v_and_b32 v{vT2}, 31, v{vT1}')
    g(f'v_lshlrev_b32 v{vT2}, 5, v{vT2}')
    g(f'v_lshrrev_b32 v{vT3}, 5, v{vT1}')
    g(f'v_lshl_add_u32 v{vPat}, v{vT3}, 4, v{vT2}')
    g(f'v_lshlrev_b32 v{vLin}, 4, v{vT1}')
    g(f's_and_b32 s{sT0}, s2, 7')
    g(f's_lshr_b32 s{sT1}, s2, 5')
    g(f's_lshl3_add_u32 s{sT0}, s{sT1}, s{sT0}')
    g(f's_lshl_b32 s{sHoff}, s{sT0}, 16')
    g(f's_bfe_u32 s{sT1}, s2, 0x20003')
    g(f's_lshl3_add_u32 s{sT1}, s{sT1}, s{sWave}')
    g(f's_lshl_b32 s{sT1}, s{sT1}, 11')
    g(f's_add_u32 s{sQoff}, s{sHoff}, s{sT1}')
    g(f's_mov_b32 s{SRD_Q+2}, 0x400000')
    g(f's_mov_b32 s{SRD_Q+3}, 0x20000')
    g(f's_mov_b32 s{SRD_K+2}, 0x400000')
    g(f's_mov_b32 s{SRD_K+3}, 0x20000')
    g(f's_cmp_lt_u32 s{sWave}, 4')
    g('s_cbranch_scc0 L_first_b')
    g('s_waitcnt lgkmcnt(0)')
    stamp(idx=13)
    qloads()
    g('s_branch L_setup')
    g.label('L_first_b')
    g(f's_and_b32 s{sT0}, s{sWave}, 1')
    g(f's_lshl_b32 s{sT0}, s{sT0}, 11')
    g(f's_add_u32 s{sDoff}, s{sHoff}, s{sT0}')
    g(f's_mov_b32 s{SRD_KV+2}, 0x400000')
    g(f's_mov_b32 s{SRD_KV+3}, 0x20000')
    g(f's_and_b32 s{sT1}, s{sWave}, 2')
    g(f's_lshl_b32 s{sT1}, s{sT1}, 15')
    g(f's_add_u32 m0, s{sT0}, s{sT1}')
    g(f's_cmp_eq_u32 s{sT1}, 0')
    g(f's_cselect_b64 vcc, -1, 0')
    g(f'v_cndmask_b32 v{vDma}, v{vLin}, v{vPat}, vcc')
    g('s_waitcnt lgkmcnt(0)')
    stamp(idx=13)
    g(f's_cselect_b64 s[{SRD_KV}:{SRD_KV+1}], s[{sK}:{sK+1}], s[{sV}:{sV+1}]')
    g(f's_and_b32 s{SRD_KV+1}, s{SRD_KV+1}, 0xffff')
    run_sched(sched[:iS])
    g.label('L_setup')
    g(f's_mov_b32 s{SRD_O}, s{sO}')
    g(f's_and_b32 s{SRD_O+1}, s{sO+1}, 0xffff')
    g(f's_mov_b32 s{SRD_O+2}, 0x400000')
    g(f's_mov_b32 s{SRD_O+3}, 0x20000')
    g(f's_mov_b32 s{sC}, 0x{C:08x}')
    g(f's_mov_b32 s{sC+1}, 0x{C:08x}')
    g(f's_mov_b32 s{sFlag}, 0')
    g(f's_mov_b32 s{sBias}, 0x{f32(float(bias)):08x}')
    g(f'v_bfe_u32 v{vT0}, v{vT1}, 2, 2')
    g(f'v_lshl_add_u32 v{vT0}, v{vT3}, 3, v{vT0}')
    g(f'v_lshlrev_b32 v{vT0}, 5, v{vT0}')
    g(f'v_and_b32 v{vT2}, 1, v{vT1}')
    g(f'v_lshl_add_u32 v{vT0}, v{vT2}, 4, v{vT0}')
    g(f'v_bfe_u32 v{vT2}, v{vT1}, 1, 1')
    g(f'v_lshl_add_u32 v{vT0}, v{vT2}, 3, v{vT0}')
    g(f'v_add_u32 v{vT0}, {LDS_V}, v{vT0}')
    g(f'v_lshlrev_b32 v{vT2}, 3, v{vT2}')
    g(f'v_add_u32 v{vT2}, {LDS_ONES+128}, v{vT2}')
    g(f'v_and_b32 v{vT3}, 16, v{vT1}')
    g(f'v_cmp_eq_u32 vcc, 0, v{vT3}')
    g(f'v_mov_b32 v{vT3}, 8192')
    g(f'v_mov_b32 v{vIdx}, 0xdddddddd')
    g(f'v_cndmask_b32 v{vVA0}, v{vT2}, v{vT0}, vcc')
    g(f'v_cndmask_b32 v{vVI}, 0, v{vT3}, vcc')
    g(f'v_mov_b32 v{vKA}, v{vLin}')
    g(f'v_mov_b32 v{vVA}, v{vVA0}')
    for i in range(16):
        g(f'v_mov_b64 {vr(OX+2*i,2)}, 0')
    stamp(idx=10)
    g(f's_cmp_lt_u32 s{sWave}, 4')
    g('s_cbranch_scc0 L_loader')
    g('s_waitcnt vmcnt(1)')
    g.label('L_q')
    if prio: g(f's_setprio {qprio}')
    stamp()
    g.c('scale Q by softmax_scale*log2(e); stand-in max = row max over 30 of the first 32 keys (less a fixed power-of-two scale)')
    def scaleq(Q, T):
        L = []
        for r in range(4):
            L.append(f'v_lshlrev_b32 v{T+2*r}, 16, v{Q+r}')
            L.append(f'v_and_b32 v{T+2*r+1}, 0xffff0000, v{Q+r}')
        for r in range(4):
            L.append(f'v_pk_mul_f32 {vr(T+2*r,2)}, {vr(T+2*r,2)}, s[{sC}:{sC+1}]')
        for r in range(4):
            L.append(f'v_cvt_pk_bf16_f32 v{Q+r}, v{T+2*r}, v{T+2*r+1}')
        return L
    def max16(S, M):
        L = [f'v_max3_f32 v{M}, v{S}, v{S+1}, v{S+2}']
        for i in range(6):
            L.append(f'v_max3_f32 v{M}, v{S+3+2*i}, v{S+4+2*i}, v{M}')
        L.append(f'v_sub_f32 v{M+1}, s{sBias}, v{M}')
        L.append(f'v_sub_f32 v{M}, s{sBias}, v{M}')
        return L
    def cfill(M, Cc):
        L = [f'v_min_f32 v{Cc}, v{M}, v{M+1}', f'v_min_f32 v{Cc+1}, v{M}, v{M+1}']
        for i in range(1, 8):
            L.append(f'v_mov_b64 {vr(Cc+2*i,2)}, {vr(Cc,2)}')
        return L
    sy = scaleq(QY, CY)
    mx, my = max16(SX, vMX), max16(SY, vMY)
    g(scaleq(QX, CX))
    g('s_cbranch_scc0 L_qy2')
    g('s_waitcnt vmcnt(0)')
    g.label('L_qy2')
    g(sy[:2])
    g(QK(SX, KB[0], QX, None))
    g(sy[2:])
    g(mx[:2])
    g(QK(SY, KB[0], QY, None))
    g(mx[2:])
    g('s_nop 1')
    g(f'v_permlane32_swap_b32 v{vMX}, v{vMX+1}')
    g('s_nop 0')
    g(cfill(vMX, CX))
    g(my[:2])
    g(QK(SX, KB[0], QX, CX))
    g(my[2:])
    g('s_nop 1')
    g(f'v_permlane32_swap_b32 v{vMY}, v{vMY+1}')
    g('s_nop 0')
    g(cfill(vMY, CY))
    g('s_setprio 2')
    g('s_cbranch_scc0 L_prio_b')
    g.label('L_go')
    stamp()

    g.c('X phase, tile 0')
    for i in range(16):
        g(EX(SX + i))
        if i == 2: g(QK(SY, KB[0], QY, CY))
        if i == barpos:
            g('s_cbranch_scc0 L_nobar')
            if stamps == 2: stamp(idx=14)
            g('s_barrier')
            g.label('L_nobar')
            stamp()
            g([rdV(0, 0), rdV(0, 1)])
        if i == min(barpos + 1, 15): g([rdV(0, 2), rdV(0, 3)])
        if i == min(barpos + 2, 15): g(rdK(1))
    g.c('Y phase, tile 0')
    for i in range(16):
        g(EX(SY + i))
        if i == 1: g(['s_waitcnt lgkmcnt(3)', PV(OX, VB[0], SX), rdV(1, 0)])
        if i == 4: g(['s_waitcnt lgkmcnt(2)', PV(OX, VB[0] + 4, SX + 8), rdV(1, 1)])
        if i == 7: g(['s_waitcnt lgkmcnt(2)', QK(SX, KB[1], QX, CX), rdV(1, 2)])
        if i == 11: g([PV(OY, VB[0], SY), 's_nop 0', rdV(1, 3)])

    def phase(p, extra=None):
        extra = extra or {}
        t = p // 2
        isX = (p % 2 == 0)
        b = t % 2; nb = 1 - b
        last = (t == 63)
        sl = {'a0': [], 'a1': [], 'a2': []}
        if isX:
            S, Sp, O, Op, Cp, Qp, Kq = SX, SY, OX, OY, CY, QY, KB[b]
            H = VB[nb] + 4
            sl['a0'] = ['s_waitcnt lgkmcnt(2)']
            if not last:
                sl['a0'] += [rdK(t + 1)]
                sl['a1'] = [rdV(t + 1, 0)]
                sl['a2'] = ['s_waitcnt lgkmcnt(2)', rdV(t + 1, 1)]
            else:
                sl['a2'] = ['s_waitcnt lgkmcnt(0)']
        else:
            S, Sp, O, Op, Cp, Qp, Kq = SY, SX, OY, OX, CX, QX, (KB[nb] if not last else None)
            H = VB[b] + 4
            if not last:
                sl['a0'] = ['s_waitcnt lgkmcnt(2)', rdV(t + 1, 2)]
                sl['a1'] = [rdV(t + 1, 3)]
                if (t + 2) % 8 == 0 and t + 2 < 64:
                    sl['a2'] = [f'v_add_u32 v{vVA}, v{vVI}, v{vVA}']
                    if loop: sl['a2'] += [f'v_add_u32 v{vKA}, 8192, v{vKA}']
        L = VB[b]
        for k, v in extra.items():
            if k.endswith('pre'): sl[k[:2]] = v + sl[k[:2]]
            else: sl[k] = sl.get(k, []) + v
        g.c(f'{"X" if isX else "Y"} phase, tile {t}')
        for i in range(16):
            g(EX(S + i))
            if i == 1:
                g(PV(Op, H, Sp + 8)); g(sl['a0'])
            if i == qkpos:
                if Kq is not None: g(QK(Sp, Kq, Qp, Cp))
                g(sl['a1'])
            if i == sp1pos:
                g(PV(O, L, S)); g(sl['a2'])

    if stamps: nst[0] += 2
    main_lines = g.lines
    g.lines = []
    g.label('L_loader')
    run_sched(sched[iS+1:iQ])
    g(f's_cmp_lt_u32 s{sWave}, 4')
    g('s_branch L_q')
    g.label('L_prio_b')
    run_sched(sched[iQ+1:])
    g('s_setprio 1')
    g(f's_cmp_lt_u32 s{sWave}, 4')
    g('s_branch L_go')
    nb_loader = len(guar)
    assert nb_loader >= 1
    spec = {}
    for (p, r) in sites:
        assert p <= 8 * guar[-1] - 3 and p >= 2, (p, guar)
        g.label(f'L_site{p}')
        g(f's_waitcnt vmcnt({vm_after(r)})')
        k = len(guar)
        if stamps == 2 and k < 2: stamp(idx=14 + k)
        g('s_barrier')
        if k < 2: stamp(idx=bst[k])
        elif k < 4: stamp(idx=[12, 11][k-2])
        guar.append(done[0] + 1)
        g(f's_branch L_back{p}')
        spec[p] = [f's_cbranch_scc0 L_site{p}', f'L_back{p}:']
    ool = g.lines
    g.lines = main_lines
    assert guar[-1] == 16 and len(guar) == len(pa) + 1, (guar, pa)
    for k, p in enumerate(pa):
        assert 2 <= p <= 8 * guar[k] - 3 and (k == 0 or p > pa[k-1]), (p, guar)
        body = (stamp_s(idx=15) if (stamps == 2 and k == 0) else []) + ['s_barrier'] + (stamp_s(idx=[5, 6, 11][k]) if k < 3 else [])
        if p in spec:
            spec[p] = [spec[p][0]] + body + [spec[p][1]]
        else:
            spec[p] = [f's_cbranch_scc0 L_skip{p}'] + body + [f'L_skip{p}:']
    px = 128 - x
    assert px not in spec
    if prio: spec[px] = [f's_cbranch_scc0 L_skip{px}', 's_setprio 0', f'L_skip{px}:']
    for p in range(2, 128):
        phase(p, {'a2pre': spec[p]} if p in spec else {})

    stamp()
    g('s_setprio 3' if prio else 's_nop 0')
    g(f'v_mov_b32 v{vT2}, 0x7b800000')
    g(PV(OY, VB[1] + 4, SY + 8))
    g.label('L_epi')
    def chk(O, T):
        g(f'v_pk_add_f32 {vr(T,2)}, {vr(O,2)}, {vr(O+2,2)}')
        g(f'v_pk_add_f32 {vr(T+2,2)}, {vr(O+4,2)}, {vr(O+6,2)}')
        g(f'v_pk_add_f32 {vr(T,2)}, {vr(T,2)}, {vr(T+2,2)}')
        g(f'v_add_f32 v{T}, v{T}, v{T+1}')
        g(f'v_fma_f32 v{T}, v{T}, 0, v{O+8}')
    def fin(O, M, P):
        for i in range(4):
            g(f'v_pk_mul_f32 {vr(O+2*i,2)}, {vr(O+2*i,2)}, {vr(M,2)} op_sel_hi:[1,0]')
        for i in range(4):
            g(f'v_cvt_pk_bf16_f32 v{P+i}, v{O+2*i}, v{O+2*i+1}')
    g(f'v_rcp_f32 v{vMX}, v{OX+8}')
    chk(OX, SX)
    g(f'v_cmp_nlt_f32 s[{sT0}:{sT0+1}], v{SX}, v{vT2}')
    fin(OX, vMX, SX+4)
    g(f'v_rcp_f32 v{vMY}, v{OY+8}')
    chk(OY, SX+8)
    g(f'v_cmp_nlt_f32 vcc, v{SX+8}, v{vT2}')
    fin(OY, vMY, SX+12)
    g(f's_or_b64 s[{sT0}:{sT0+1}], s[{sT0}:{sT0+1}], vcc')
    g('s_cbranch_scc1 L_redo')
    g.label('L_store')
    g(f'buffer_store_dwordx4 {vr(SX+4,4)}, v{vPat}, s[{SRD_O}:{SRD_O+3}], s{sQoff} offen{STM}')
    g(f'buffer_store_dwordx4 {vr(SX+12,4)}, v{vPat}, s[{SRD_O}:{SRD_O+3}], s{sQoff} offen offset:1024{STM}')
    if stamps:
        g('s_waitcnt vmcnt(0)')
        stamp(); stamp(True)
        g('s_waitcnt lgkmcnt(0)')
        g(f's_mov_b32 s12, s{sWs}'); g(f's_and_b32 s13, s{sWs+1}, 0xffff'); g('s_mov_b32 s14, 0x1000000'); g('s_mov_b32 s15, 0x20000')
        g(f's_lshl_b32 s32, s2, 3'); g(f's_add_u32 s32, s32, s{sWave}'); g('s_lshl_b32 s32, s32, 6')
        g('s_mov_b64 exec, 1')
        g('v_mov_b32 v0, 0')
        for i in list(range(nst[0])) + [10, 11, 12, 13] + ([14, 15] if stamps == 2 else []):
            g(f'v_mov_b32 v1, s{40+2*i}')
            g(f'buffer_store_dword v1, v0, s[12:15], s32 offen offset:{4*i}')
        if stamps == 1:
            g('s_getreg_b32 s33, hwreg(HW_REG_XCC_ID)')
            g('v_mov_b32 v1, s33')
            g(f'buffer_store_dword v1, v0, s[12:15], s32 offen offset:{4*15}')
            g('s_getreg_b32 s33, hwreg(HW_REG_HW_ID)')
            g('v_mov_b32 v1, s33')
            g(f'buffer_store_dword v1, v0, s[12:15], s32 offen offset:{4*14}')
    g.label('L_end')
    g('s_endpgm')

    g.lines.extend(ool)

    g.label('L_redo')
    g(f's_cmp_lg_u32 s{sFlag}, 0')
    g('s_cbranch_scc1 L_store')
    g(f's_mov_b32 s{sFlag}, 1')
    g(f's_mov_b32 s{sCnt}, 64')
    g(f'v_mov_b32 v{vKA}, v{vLin}')
    g(f'v_mov_b32 v{vMX}, 0xff800000')
    g(f'v_mov_b32 v{vMY}, 0xff800000')
    g.label('L_maxloop')
    g(f'ds_read_b128 {vr(KB[0],4)}, v{vKA}')
    g(f'v_add_u32 v{vKA}, 1024, v{vKA}')
    g(f's_sub_u32 s{sCnt}, s{sCnt}, 1')
    g('s_waitcnt lgkmcnt(0)')
    g(QK(SX, KB[0], QX, None))
    g(QK(SY, KB[0], QY, None))
    g('s_nop 11')
    for i in range(8):
        g(f'v_max3_f32 v{vMX}, v{SX+2*i}, v{SX+2*i+1}, v{vMX}')
    g('s_nop 3')
    for i in range(8):
        g(f'v_max3_f32 v{vMY}, v{SY+2*i}, v{SY+2*i+1}, v{vMY}')
    g(f's_cmp_lg_u32 s{sCnt}, 0')
    g('s_cbranch_scc1 L_maxloop')
    g(f'v_mov_b32 v{vT0}, v{vMX}')
    g(f'v_mov_b32 v{vT1}, v{vMY}')
    g(f'v_mov_b32 v{vKA}, v{vLin}')
    g(f'v_mov_b32 v{vVA}, v{vVA0}')
    g(f'v_permlane32_swap_b32 v{vMX}, v{vT0}')
    g(f'v_permlane32_swap_b32 v{vMY}, v{vT1}')
    g(f'v_lshrrev_b32 v{vVI}, 3, v{vVI}')
    g(f'v_mov_b32 v{vT3}, 0x41300000')
    g(f'v_max_f32 v{vMX}, v{vMX}, v{vT0}')
    g(f'v_max_f32 v{vMY}, v{vMY}, v{vT1}')
    g(f'v_add_f32 v{vMX}, v{vT3}, v{vMX}')
    g(f'v_add_f32 v{vMY}, v{vT3}, v{vMY}')
    for i in range(16):
        g(f'v_sub_f32 v{CX+i}, 0, v{vMX}')
        g(f'v_sub_f32 v{CY+i}, 0, v{vMY}')
        g(f'v_mov_b64 {vr(OX+2*i,2)}, 0')
    g(f's_mov_b32 s{sCnt}, 64')
    g.label('L_slow')
    g(f'ds_read_b128 {vr(KB[0],4)}, v{vKA}')
    for k in range(4):
        g(f'ds_read_b64_tr_b16 {vr(VB[0]+2*k,2)}, v{vVA} offset:{VO[k]}')
    g(f'v_add_u32 v{vKA}, 1024, v{vKA}')
    g(f'v_add_u32 v{vVA}, v{vVI}, v{vVA}')
    g(f's_sub_u32 s{sCnt}, s{sCnt}, 1')
    g('s_waitcnt lgkmcnt(0)')
    g(QK(SX, KB[0], QX, CX))
    g(QK(SY, KB[0], QY, CY))
    g('s_nop 11')
    for i in range(32):
        g(EX(SX + i))
    g('s_nop 1')
    g(PV(OX, VB[0], SX))
    g(PV(OY, VB[0], SY))
    g(PV(OX, VB[0] + 4, SX + 8))
    g(PV(OY, VB[0] + 4, SY + 8))
    g('s_nop 15')
    g(f's_cmp_lg_u32 s{sCnt}, 0')
    g('s_cbranch_scc1 L_slow')
    g('s_branch L_epi')

    g.raw('.section .rodata,"a"')
    g.raw('.p2align 6')
    g.raw(f'.amdhsa_kernel {NAME}_kernel')
    g.raw(f'  .amdhsa_next_free_vgpr {NV}')
    g.raw(f'  .amdhsa_next_free_sgpr {80 if stamps else 40}')
    g.raw(f'  .amdhsa_accum_offset {(NV+3)//4*4}')
    g.raw('  .amdhsa_group_segment_fixed_size 0')
    g.raw('  .amdhsa_kernarg_size 48')
    g.raw('  .amdhsa_user_sgpr_count 2')
    g.raw('  .amdhsa_user_sgpr_kernarg_segment_ptr 1')
    g.raw('  .amdhsa_system_sgpr_workgroup_id_x 1')
    g.raw('.end_amdhsa_kernel')
    return '\n'.join(g.lines) + '\n'

if __name__ == '__main__':
    out = sys.argv[1] if len(sys.argv) > 1 else f'cdna_kernels/{NAME}.s'
    kw = dict(a.split('=') for a in sys.argv[2:])
    kw = {k: (v if k in ('sched', 'pa', 'sites') else int(v)) for k, v in kw.items()}
    open(out, 'w').write(build(**kw))
```

```python
import struct, sys, math

NAME = 'standalone__fused_io_aware_attn__prompt'
def f32(x):
    return struct.unpack('<I', struct.pack('<f', x))[0]

HEADER = '''; Kernarg layout for this problem (48 bytes, ptrs only, base s[0:1]):
;   offset  40: d_ws      268435456 bytes workspace
'''

class Gen:
    def __init__(self):
        self.lines = []
    def __call__(self, s):
        if isinstance(s, list):
            for x in s: self(x)
        elif s.endswith(':'): self.lines.append(s)
        else: self.lines.append('    ' + s)
    def label(self, s):
        self.lines.append(s + ':')
    def c(self, s):
        self.lines.append('    ; ' + s)
    def raw(self, s):
        self.lines.append(s)

def vr(base, n):
    return f'v[{base}:{base+n-1}]'

def build(x=25, stamps=0, prio=1, qkpos=4, sp1pos=10, st=3, barpos=11,
          sched='r,S,r,O,W0,B,q,r,r,W1,B,r,r,r,r,Wq,Q,W3,B,r,r,r,r,r,r,r,r', pa='5,13,29,61', sites='2:7,7:15', qprio=3, bias=45, oolpos=0, qp=2, bcy=(2, 6), vfirst=0, il=0, ybar=13, tst=1):
    loop = 0
    sched = sched.split(',')
    pa = [int(v) for v in pa.split(',')] if pa else []
    sites = [tuple(int(u) for u in v.split(':')) for v in sites.split(',')] if sites else []
    g = Gen()
    nst = [0]
    def stamp_s(real=False, idx=None):
        if not stamps: return []
        if idx is None:
            idx = nst[0]; nst[0] += 1
        return [f's_mem{"real" if real else ""}time s[{40+2*idx}:{41+2*idx}]']
    def stamp(real=False, idx=None):
        g(stamp_s(real, idx))

    SX, SY = 0, 16
    OX, OY = 32, 48
    CX, CY = 64, 80
    QX, QY = 96, 100
    KB = [104, 108]
    VB = [112, 120]
    vKA, vVA, vVI = 128, 129, 130
    vPat, vDma = 131, 132
    vIdx = 133
    vT0, vT1, vT2, vT3 = 134, 135, 136, 137
    vMX, vMY = 138, 140
    vVA0, vLin = 142, 143
    NV = 144
    sQ, sK, sV, sO = 4, 6, 8, 10
    SRD_Q, SRD_KV, SRD_O, SRD_K = 12, 16, 20, 24
    sWave, sHoff, sQoff, sDoff = 28, 29, 30, 31
    sC = 32
    sT0, sT1 = 34, 35
    sCnt, sFlag = 36, 37
    sBias = 3
    sWs = 38
    LDS_V = 65536
    LDS_ONES = 131072
    LDS_TOTAL = 131072 + 8192
    STM = ['', ' nt', ' sc1', ' sc0 sc1', ' sc0 sc1 nt'][st]
    VO = [0, 128, 512, 640]
    C = f32(0.25 * math.log2(math.e))

    def dma(off=0):
        return f'buffer_load_dwordx4 v{vDma}, s[{SRD_KV}:{SRD_KV+3}], s{sDoff} offen' + (f' offset:{off}' if off else '') + ' lds'
    issued = []
    guar = []
    done = [-1]
    def dround():
        r = sum(1 for u in issued if u != 'q') // 2
        g(dma()); g(dma(2048 if il else 1024))
        issued.extend([r, r])
        if r < 15:
            g(f's_add_u32 m0, m0, 0x1000')
            g(f's_add_u32 s{sDoff}, s{sDoff}, 0x1000')
    def vm_after(tag):
        i = max(k for k, u in enumerate(issued) if u == tag)
        for u in issued[:i+1]:
            if u != 'q': done[0] = max(done[0], u)
        return len(issued) - 1 - i
    bst = [5, 6]
    def run_sched(toks):
        for tk in toks:
            if tk == 'r': dround()
            elif tk == 'q': qloads(); issued.extend(['q'] * 3)
            elif tk == 'Wq': g(f's_waitcnt vmcnt({vm_after("q")})')
            elif tk == 'Wh':
                assert il and not guar
                g(f's_waitcnt vmcnt({len(issued) - 1 - issued.index(0)}) lgkmcnt(0)')
                done[0] = -0.5
            elif tk[0] == 'W': g(f's_waitcnt vmcnt({vm_after(int(tk[1:]))})' + (' lgkmcnt(0)' if not guar else ''))
            elif tk == 'B':
                if stamps == 2 and len(guar) < 2: stamp(idx=14 + len(guar))
                g('s_barrier')
                if len(guar) < 2: stamp(idx=bst[len(guar)])
                guar.append(done[0] + 1)
            elif tk == 'O':
                assert not guar
                g(f's_cmp_lg_u32 s{sWave}, 7')
                g('s_cbranch_scc1 L_noones')
                g(f'v_lshlrev_b32 v{vT2}, 7, v{vT1}')
                g(f'v_add_u32 v{vT2}, {LDS_ONES}, v{vT2}')
                g(f'v_mov_b32 v{VB[0]}, 0x3f80')
                g(f'v_mov_b32 v{VB[0]+1}, 0')
                g(f'v_mov_b64 {vr(VB[0]+2,2)}, 0')
                g(f'ds_write_b128 v{vT2}, {vr(VB[0],4)}')
                g.label('L_noones')
            else: raise ValueError(tk)
    iS, iQ = sched.index('S'), sched.index('Q')
    assert iS < iQ and sched.count('r') == 16 and sched.count('q') == 1 and sched.index('O') > iS
    def qloads():
        g(f's_mov_b32 s{SRD_Q}, s{sQ}')
        g(f's_and_b32 s{SRD_Q+1}, s{sQ+1}, 0xffff')
        g(f'buffer_load_dwordx4 {vr(QX,4)}, v{vPat}, s[{SRD_Q}:{SRD_Q+3}], s{sQoff} offen')
        g(f's_mov_b32 s{SRD_K}, s{sK}')
        g(f's_and_b32 s{SRD_K+1}, s{sK+1}, 0xffff')
        g(f'buffer_load_dwordx4 {vr(KB[0],4)}, v{vPat}, s[{SRD_K}:{SRD_K+3}], s{sHoff} offen')
        g(f'buffer_load_dwordx4 {vr(QY,4)}, v{vPat}, s[{SRD_Q}:{SRD_Q+3}], s{sQoff} offen offset:1024')
    def QK(S, K, Q, Cc):
        return f'v_mfma_f32_32x32x16_bf16 {vr(S,16)}, {vr(K,4)}, {vr(Q,4)}, ' + (vr(Cc, 16) if Cc is not None else '0')
    def PV(O, V, P):
        return f'v_smfmac_f32_32x32x32_bf16 {vr(O,16)}, {vr(V,4)}, {vr(P,8)}, v{vIdx}'
    def EX(r):
        return f'v_exp_f32 v{r}, v{r}'
    def rdV(tau, k):
        return f'ds_read_b64_tr_b16 {vr(VB[tau%2]+2*k,2)}, v{vVA} offset:{(tau%8)*1024+VO[k]}'
    def rdK(tau):
        return f'ds_read_b128 {vr(KB[tau%2],4)}, v{vKA} offset:{(tau % 8) * 1024 if loop else tau * 1024}'

    g.raw(HEADER + f'; @launch grid=(256,1,1) block=(512,1,1) lds={LDS_TOTAL}')
    g.raw('.amdgcn_target "amdgcn-amd-amdhsa--gfx950"')
    g.raw('.text')
    g.raw(f'.globl {NAME}_kernel')
    g.raw('.p2align 8')
    g.raw(f'.type {NAME}_kernel,@function')
    g.label(f'{NAME}_kernel')
    g('s_load_dwordx8 s[4:11], s[0:1], 0')
    stamp(True); stamp()
    if stamps: g(f's_load_dwordx2 s[{sWs}:{sWs+1}], s[0:1], 40')
    g(f'v_lshrrev_b32 v{vT0}, 6, v0')
    g(f'v_and_b32 v{vT1}, 63, v0')
    g(f'v_readfirstlane_b32 s{sWave}, v{vT0}')
    g('s_cmp_ge_u32 s2, 256')
    g('s_cbranch_scc1 L_end')
    g(f'v_and_b32 v{vT2}, 31, v{vT1}')
    g(f'v_lshlrev_b32 v{vT2}, 5, v{vT2}')
    g(f'v_lshrrev_b32 v{vT3}, 5, v{vT1}')
    g(f'v_lshl_add_u32 v{vPat}, v{vT3}, 4, v{vT2}')
    g(f'v_lshlrev_b32 v{vLin}, 4, v{vT1}')
    g(f's_and_b32 s{sT0}, s2, 7')
    g(f's_lshr_b32 s{sT1}, s2, 5')
    g(f's_lshl3_add_u32 s{sT0}, s{sT1}, s{sT0}')
    g(f's_lshl_b32 s{sHoff}, s{sT0}, 16')
    g(f's_bfe_u32 s{sT1}, s2, 0x20003')
    g(f's_lshl3_add_u32 s{sT1}, s{sT1}, s{sWave}')
    g(f's_lshl_b32 s{sT1}, s{sT1}, 11')
    g(f's_add_u32 s{sQoff}, s{sHoff}, s{sT1}')
    g(f's_mov_b32 s{SRD_Q+2}, 0x400000')
    g(f's_mov_b32 s{SRD_Q+3}, 0x20000')
    g(f's_mov_b32 s{SRD_K+2}, 0x400000')
    g(f's_mov_b32 s{SRD_K+3}, 0x20000')
    g(f's_cmp_lt_u32 s{sWave}, 4')
    g('s_cbranch_scc0 L_first_b')
    g('s_waitcnt lgkmcnt(0)')
    stamp(idx=13)
    qloads()
    g('s_branch L_setup')
    g.label('L_first_b')
    g(f's_and_b32 s{sT0}, s{sWave}, 1')
    g(f's_lshl_b32 s{sT0}, s{sT0}, {10 if il else 11}')
    g(f's_add_u32 s{sDoff}, s{sHoff}, s{sT0}')
    g(f's_mov_b32 s{SRD_KV+2}, 0x400000')
    g(f's_mov_b32 s{SRD_KV+3}, 0x20000')
    g(f's_andn2_b32 s{sT1}, 2, s{sWave}' if vfirst else f's_and_b32 s{sT1}, s{sWave}, 2')
    g(f's_lshl_b32 s{sT1}, s{sT1}, 15')
    g(f's_add_u32 m0, s{sT0}, s{sT1}')
    g(f's_cmp_eq_u32 s{sT1}, 0')
    g(f's_cselect_b64 vcc, -1, 0')
    g(f'v_cndmask_b32 v{vDma}, v{vLin}, v{vPat}, vcc')
    g('s_waitcnt lgkmcnt(0)')
    stamp(idx=13)
    g(f's_cselect_b64 s[{SRD_KV}:{SRD_KV+1}], s[{sK}:{sK+1}], s[{sV}:{sV+1}]')
    g(f's_and_b32 s{SRD_KV+1}, s{SRD_KV+1}, 0xffff')
    run_sched(sched[:iS])
    ool_at = len(g.lines)
    g.label('L_setup')
    g(f's_mov_b32 s{SRD_O}, s{sO}')
    g(f's_and_b32 s{SRD_O+1}, s{sO+1}, 0xffff')
    g(f's_mov_b32 s{SRD_O+2}, 0x400000')
    g(f's_mov_b32 s{SRD_O+3}, 0x20000')
    g(f's_mov_b32 s{sC}, 0x{C:08x}')
    g(f's_mov_b32 s{sC+1}, 0x{C:08x}')
    g(f's_mov_b32 s{sFlag}, 0')
    g(f's_mov_b32 s{sBias}, 0x{f32(float(bias)):08x}')
    g(f'v_bfe_u32 v{vT0}, v{vT1}, 2, 2')
    g(f'v_lshl_add_u32 v{vT0}, v{vT3}, 3, v{vT0}')
    g(f'v_lshlrev_b32 v{vT0}, 5, v{vT0}')
    g(f'v_and_b32 v{vT2}, 1, v{vT1}')
    g(f'v_lshl_add_u32 v{vT0}, v{vT2}, 4, v{vT0}')
    g(f'v_bfe_u32 v{vT2}, v{vT1}, 1, 1')
    g(f'v_lshl_add_u32 v{vT0}, v{vT2}, 3, v{vT0}')
    g(f'v_add_u32 v{vT0}, {LDS_V}, v{vT0}')
    g(f'v_lshlrev_b32 v{vT2}, 3, v{vT2}')
    g(f'v_add_u32 v{vT2}, {LDS_ONES+128}, v{vT2}')
    g(f'v_and_b32 v{vT3}, 16, v{vT1}')
    g(f'v_cmp_eq_u32 vcc, 0, v{vT3}')
    g(f'v_mov_b32 v{vT3}, 8192')
    g(f'v_mov_b32 v{vIdx}, 0xdddddddd')
    g(f'v_cndmask_b32 v{vVA0}, v{vT2}, v{vT0}, vcc')
    g(f'v_cndmask_b32 v{vVI}, 0, v{vT3}, vcc')
    g(f'v_mov_b32 v{vKA}, v{vLin}')
    g(f'v_mov_b32 v{vVA}, v{vVA0}')
    for i in range(16):
        g(f'v_mov_b64 {vr(OX+2*i,2)}, 0')
    if qp:
        g(f'v_mov_b32 v{KB[1]}, 0.5')
        g(f'v_mov_b32 v{KB[1]+1}, 0')
        g(f'v_mov_b64 {vr(KB[1]+2,2)}, 0')
        for i in range(4):
            g(f'v_mov_b64 {vr(VB[1]+2*i,2)}, 0')
    stamp(idx=10)
    g(f's_cmp_lt_u32 s{sWave}, 4')
    g('s_cbranch_scc0 L_loader')
    g('s_waitcnt vmcnt(1)')
    g.label('L_q')
    if prio: g(f's_setprio {qprio}')
    stamp()
    g.c('scale Q by softmax_scale*log2(e); stand-in max taken from the scores of the first keys (less a fixed power-of-two scale)')
    def scaleq(Q, T):
        L = []
        for r in range(4):
            L.append(f'v_lshlrev_b32 v{T+2*r}, 16, v{Q+r}')
            L.append(f'v_and_b32 v{T+2*r+1}, 0xffff0000, v{Q+r}')
        for r in range(4):
            L.append(f'v_pk_mul_f32 {vr(T+2*r,2)}, {vr(T+2*r,2)}, s[{sC}:{sC+1}]')
        for r in range(4):
            L.append(f'v_cvt_pk_bf16_f32 v{Q+r}, v{T+2*r}, v{T+2*r+1}')
        return L
    def max16(S, M):
        L = [f'v_max3_f32 v{M}, v{S}, v{S+1}, v{S+2}']
        for i in range(6):
            L.append(f'v_max3_f32 v{M}, v{S+3+2*i}, v{S+4+2*i}, v{M}')
        L.append(f'v_sub_f32 v{M+1}, s{sBias}, v{M}')
        L.append(f'v_sub_f32 v{M}, s{sBias}, v{M}')
        return L
    def cfill(M, Cc):
        L = [f'v_min_f32 v{Cc}, v{M}, v{M+1}', f'v_min_f32 v{Cc+1}, v{M}, v{M+1}']
        for i in range(1, 8):
            L.append(f'v_mov_b64 {vr(Cc+2*i,2)}, {vr(Cc,2)}')
        return L
    sy = scaleq(QY, CY)
    mx, my = max16(SX, vMX), max16(SY, vMY)
    g(scaleq(QX, CX))
    g('s_cbranch_scc0 L_qy2')
    g('s_waitcnt vmcnt(0)')
    g.label('L_qy2')
    def BC(D, Bq, Cc):
        return QK(D, KB[1], Bq, Cc)
    def offs(S, T):
        return [f'v_max3_f32 v{T}, v{S}, v{S+1}, v{S+2}', f'v_sub_f32 v{T}, s{sBias}, v{T}', f'v_and_b32 v{T}, 0xffff0000, v{T}']
    if qp == 2:
        g(sy[:2])
        g(QK(SX, KB[0], QX, None))
        g(sy[2:14])
        g(offs(SX, VB[1]))
        g(sy[14:])
        g(BC(SX, VB[1], SX))
        g('s_nop 0')
        g(QK(SY, KB[0], QY, None))
        g('s_nop 3')
    elif qp:
        g(sy[:2])
        g(QK(SX, KB[0], QX, None))
        g(sy[2:])
        g(offs(SX, VB[1]))
        g(QK(SY, KB[0], QY, None))
        g('s_nop 0')
        g(BC(SX, VB[1], SX))
        g(BC(CX, VB[1], None))
        g('s_nop 7')
        g('s_nop 0')
        g(offs(SY, VB[1] + 4))
    else:
        g(sy[:2])
        g(QK(SX, KB[0], QX, None))
        g(sy[2:])
        g(mx[:2])
        g(QK(SY, KB[0], QY, None))
        g(mx[2:])
        g('s_nop 1')
        g(f'v_permlane32_swap_b32 v{vMX}, v{vMX+1}')
        g('s_nop 0')
        g(cfill(vMX, CX))
        g(my[:2])
        g(QK(SX, KB[0], QX, CX))
        g(my[2:])
        g('s_nop 1')
        g(f'v_permlane32_swap_b32 v{vMY}, v{vMY+1}')
        g('s_nop 0')
        g(cfill(vMY, CY))
    g('s_setprio 2' if qp != 2 else 's_nop 0')
    g('s_cbranch_scc0 L_prio_b')
    g.label('L_go')
    stamp()

    g.c('X phase, tile 0')
    for i in range(16):
        g(EX(SX + i))
        if not qp and i == 2: g(QK(SY, KB[0], QY, CY))
        if qp == 1 and i == bcy[0]: g(BC(SY, VB[1] + 4, SY))
        if qp == 1 and i == bcy[1]: g(BC(CY, VB[1] + 4, None))
        if qp == 2 and i == 1: g(BC(CX, VB[1], None))
        if qp == 2 and i == 6: g(offs(SY, VB[1] + 4))
        if qp == 2 and i == 8: g(BC(SY, VB[1] + 4, SY))
        if qp == 2 and i == 12: g(BC(CY, VB[1] + 4, None))
        if i == barpos:
            if qp == 2: g('s_setprio 1')
            g('s_cbranch_scc0 L_nobar')
            if qp == 2: g('s_setprio 2')
            if stamps == 2: stamp(idx=14)
            g('s_barrier')
            g.label('L_nobar')
            stamp()
            g([rdV(0, 0), rdV(0, 1)])
        if i == min(barpos + 1, 15): g([rdV(0, 2), rdV(0, 3)])
        if i == min(barpos + 2, 15): g(rdK(1))
    g.c('Y phase, tile 0')
    for i in range(16):
        g(EX(SY + i))
        if i == 1: g(['s_waitcnt lgkmcnt(3)', PV(OX, VB[0], SX), rdV(1, 0)])
        if i == 4: g(['s_waitcnt lgkmcnt(2)', PV(OX, VB[0] + 4, SX + 8), rdV(1, 1)])
        if i == 7: g(['s_waitcnt lgkmcnt(2)', QK(SX, KB[1], QX, CX), rdV(1, 2)])
        if i == 11: g([PV(OY, VB[0], SY), 's_nop 0', rdV(1, 3)])
        if i == ybar and 'Wh' in sched: g(['s_cbranch_scc0 L_nobar2', 's_barrier', 'L_nobar2:'])

    def phase(p, extra=None):
        extra = extra or {}
        t = p // 2
        isX = (p % 2 == 0)
        b = t % 2; nb = 1 - b
        last = (t == 63)
        sl = {'a0': [], 'a1': [], 'a2': []}
        if isX:
            S, Sp, O, Op, Cp, Qp, Kq = SX, SY, OX, OY, CY, QY, KB[b]
            H = VB[nb] + 4
            sl['a0'] = ['s_waitcnt lgkmcnt(2)']
            if not last:
                sl['a0'] += [rdK(t + 1)]
                sl['a1'] = [rdV(t + 1, 0)]
                sl['a2'] = ['s_waitcnt lgkmcnt(2)', rdV(t + 1, 1)]
            else:
                sl['a2'] = ['s_waitcnt lgkmcnt(0)']
        else:
            S, Sp, O, Op, Cp, Qp, Kq = SY, SX, OY, OX, CX, QX, (KB[nb] if not last else None)
            H = VB[b] + 4
            if not last:
                sl['a0'] = ['s_waitcnt lgkmcnt(2)', rdV(t + 1, 2)]
                sl['a1'] = [rdV(t + 1, 3)]
                if (t + 2) % 8 == 0 and t + 2 < 64:
                    sl['a2'] = [f'v_add_u32 v{vVA}, v{vVI}, v{vVA}']
                    if loop: sl['a2'] += [f'v_add_u32 v{vKA}, 8192, v{vKA}']
        L = VB[b]
        for k, v in extra.items():
            if k.endswith('pre'): sl[k[:2]] = v + sl[k[:2]]
            else: sl[k] = sl.get(k, []) + v
        g.c(f'{"X" if isX else "Y"} phase, tile {t}')
        for i in range(16):
            g(EX(S + i))
            if i == 1:
                g(PV(Op, H, Sp + 8)); g(sl['a0'])
            if i == qkpos:
                if Kq is not None: g(QK(Sp, Kq, Qp, Cp))
                g(sl['a1'])
            if i == sp1pos:
                g(PV(O, L, S)); g(sl['a2'])

    if stamps: nst[0] += 2
    main_lines = g.lines
    g.lines = []
    g.label('L_loader')
    run_sched(sched[iS+1:iQ])
    g(f's_cmp_lt_u32 s{sWave}, 4')
    g('s_branch L_q')
    g.label('L_prio_b')
    run_sched(sched[iQ+1:])
    if qp != 2: g('s_setprio 1')
    g(f's_cmp_lt_u32 s{sWave}, 4')
    g('s_branch L_go')
    nb_loader = len(guar)
    assert nb_loader >= 1
    spec = {}
    for (p, r) in sites:
        assert p <= 8 * guar[-1] - 3 and p >= 2, (p, guar)
        g.label(f'L_site{p}')
        g(f's_waitcnt vmcnt({vm_after(r)})')
        k = len(guar)
        if stamps == 2 and k < 2: stamp(idx=14 + k)
        g('s_barrier')
        if k < 2: stamp(idx=bst[k])
        elif k < 4: stamp(idx=[12, 11][k-2])
        guar.append(done[0] + 1)
        g(f's_branch L_back{p}')
        spec[p] = [f's_cbranch_scc0 L_site{p}', f'L_back{p}:']
    ool = g.lines
    g.lines = main_lines
    if 'Wh' in sched:
        assert guar[0] == 0.5 and nb_loader >= 2
        guar = guar[1:]
    assert guar[-1] == 16 and len(guar) == len(pa) + 1, (guar, pa)
    for k, p in enumerate(pa):
        assert 2 <= p <= 8 * guar[k] - 3 and (k == 0 or p > pa[k-1]), (p, guar)
        body = (stamp_s(idx=15) if (stamps == 2 and k == 0) else []) + ['s_barrier'] + (stamp_s(idx=[5, 6, 11][k]) if k < 3 else [])
        if p in spec:
            spec[p] = [spec[p][0]] + body + [spec[p][1]]
        else:
            spec[p] = [f's_cbranch_scc0 L_skip{p}'] + body + [f'L_skip{p}:']
    px = 128 - x
    assert px not in spec
    if prio: spec[px] = [f's_cbranch_scc0 L_skip{px}', 's_setprio 0', f'L_skip{px}:']
    for p in range(2, 128):
        phase(p, {'a2pre': spec[p]} if p in spec else {})

    stamp()
    g('s_setprio 3' if prio else 's_nop 0')
    LO, HI = 0x35800000, 0x7b800000
    def chk(O, T):
        return [f'v_pk_add_f32 {vr(T,2)}, {vr(O,2)}, {vr(O+2,2)}',
                f'v_pk_add_f32 {vr(T+2,2)}, {vr(O+4,2)}, {vr(O+6,2)}',
                f'v_pk_add_f32 {vr(T,2)}, {vr(T,2)}, {vr(T+2,2)}',
                f'v_add_f32 v{T}, v{T}, v{T+1}',
                f'v_fma_f32 v{T}, v{T}, 0, v{O+8}',
                f'v_subrev_u32 v{T}, 0x{LO:08x}, v{T}']
    def fin(O, M, P):
        for i in range(4):
            g(f'v_pk_mul_f32 {vr(O+2*i,2)}, {vr(O+2*i,2)}, {vr(M,2)} op_sel_hi:[1,0]')
        for i in range(4):
            g(f'v_cvt_pk_bf16_f32 v{P+i}, v{O+2*i}, v{O+2*i+1}')
    stX = f'buffer_store_dwordx4 {vr(SX+4,4)}, v{vPat}, s[{SRD_O}:{SRD_O+3}], s{sQoff} offen{STM}'
    stY = f'buffer_store_dwordx4 {vr(SX+12,4)}, v{vPat}, s[{SRD_O}:{SRD_O+3}], s{sQoff} offen offset:1024{STM}'
    if tst:
        g(f'v_rcp_f32 v{vMX}, v{OX+8}')
        g(PV(OY, VB[1] + 4, SY + 8))
        g.label('L_epi')
        cx = chk(OX, SX)
        fin(OX, vMX, SX+4)
        g(stX)
        g(cx[:3])
        g(f'v_rcp_f32 v{vMY}, v{OY+8}')
        g(cx[3])
        fin(OY, vMY, SX+12)
        g(stY)
        g(f'v_mov_b32 v{vT2}, 0x{HI-LO:08x}')
        g(cx[4:])
        g(chk(OY, SX+8))
        g(f'v_max_u32 v{SX}, v{SX}, v{SX+8}')
        g(f'v_cmp_ge_u32 vcc, v{SX}, v{vT2}')
        g('s_cbranch_vccnz L_redo')
        g.label('L_store')
    else:
        g(f'v_mov_b32 v{vT2}, 0x{HI-LO:08x}')
        g(PV(OY, VB[1] + 4, SY + 8))
        g.label('L_epi')
        g(f'v_rcp_f32 v{vMX}, v{OX+8}')
        g(chk(OX, SX))
        g(f'v_cmp_ge_u32 s[{sT0}:{sT0+1}], v{SX}, v{vT2}')
        fin(OX, vMX, SX+4)
        g(f'v_rcp_f32 v{vMY}, v{OY+8}')
        g(chk(OY, SX+8))
        g(f'v_cmp_ge_u32 vcc, v{SX+8}, v{vT2}')
        fin(OY, vMY, SX+12)
        g(f's_or_b64 s[{sT0}:{sT0+1}], s[{sT0}:{sT0+1}], vcc')
        g('s_cbranch_scc1 L_redo')
        g.label('L_store')
        g(stX)
        g(stY)
    if stamps:
        g('s_waitcnt vmcnt(0)')
        stamp(); stamp(True)
        g('s_waitcnt lgkmcnt(0)')
        g(f's_mov_b32 s12, s{sWs}'); g(f's_and_b32 s13, s{sWs+1}, 0xffff'); g('s_mov_b32 s14, 0x1000000'); g('s_mov_b32 s15, 0x20000')
        g(f's_lshl_b32 s32, s2, 3'); g(f's_add_u32 s32, s32, s{sWave}'); g('s_lshl_b32 s32, s32, 6')
        g('s_mov_b64 exec, 1')
        g('v_mov_b32 v0, 0')
        for i in list(range(nst[0])) + [10, 11, 12, 13] + ([14, 15] if stamps == 2 else []):
            g(f'v_mov_b32 v1, s{40+2*i}')
            g(f'buffer_store_dword v1, v0, s[12:15], s32 offen offset:{4*i}')
        if stamps == 1:
            g('s_getreg_b32 s33, hwreg(HW_REG_XCC_ID)')
            g('v_mov_b32 v1, s33')
            g(f'buffer_store_dword v1, v0, s[12:15], s32 offen offset:{4*15}')
            g('s_getreg_b32 s33, hwreg(HW_REG_HW_ID)')
            g('v_mov_b32 v1, s33')
            g(f'buffer_store_dword v1, v0, s[12:15], s32 offen offset:{4*14}')
    g.label('L_end')
    g('s_endpgm')

    if oolpos: g.lines[ool_at:ool_at] = ['    s_branch L_setup'] + ool
    else: g.lines.extend(ool)

    g.label('L_redo')
    g(f's_cmp_lg_u32 s{sFlag}, 0')
    g('s_cbranch_scc1 L_store')
    g(f's_mov_b32 s{sFlag}, 1')
    g('s_waitcnt vmcnt(0)')
    g(f's_mov_b32 s{sCnt}, 64')
    g(f'v_mov_b32 v{vKA}, v{vLin}')
    g(f'v_mov_b32 v{vMX}, 0xff800000')
    g(f'v_mov_b32 v{vMY}, 0xff800000')
    g.label('L_maxloop')
    g(f'ds_read_b128 {vr(KB[0],4)}, v{vKA}')
    g(f'v_add_u32 v{vKA}, 1024, v{vKA}')
    g(f's_sub_u32 s{sCnt}, s{sCnt}, 1')
    g('s_waitcnt lgkmcnt(0)')
    g(QK(SX, KB[0], QX, None))
    g(QK(SY, KB[0], QY, None))
    g('s_nop 11')
    for i in range(8):
        g(f'v_max3_f32 v{vMX}, v{SX+2*i}, v{SX+2*i+1}, v{vMX}')
    g('s_nop 3')
    for i in range(8):
        g(f'v_max3_f32 v{vMY}, v{SY+2*i}, v{SY+2*i+1}, v{vMY}')
    g(f's_cmp_lg_u32 s{sCnt}, 0')
    g('s_cbranch_scc1 L_maxloop')
    g(f'v_mov_b32 v{vT0}, v{vMX}')
    g(f'v_mov_b32 v{vT1}, v{vMY}')
    g(f'v_mov_b32 v{vKA}, v{vLin}')
    g(f'v_mov_b32 v{vVA}, v{vVA0}')
    g(f'v_permlane32_swap_b32 v{vMX}, v{vT0}')
    g(f'v_permlane32_swap_b32 v{vMY}, v{vT1}')
    g(f'v_lshrrev_b32 v{vVI}, 3, v{vVI}')
    g(f'v_mov_b32 v{vT3}, 0x41300000')
    g(f'v_max_f32 v{vMX}, v{vMX}, v{vT0}')
    g(f'v_max_f32 v{vMY}, v{vMY}, v{vT1}')
    g(f'v_add_f32 v{vMX}, v{vT3}, v{vMX}')
    g(f'v_add_f32 v{vMY}, v{vT3}, v{vMY}')
    for i in range(16):
        g(f'v_sub_f32 v{CX+i}, 0, v{vMX}')
        g(f'v_sub_f32 v{CY+i}, 0, v{vMY}')
        g(f'v_mov_b64 {vr(OX+2*i,2)}, 0')
    g(f's_mov_b32 s{sCnt}, 64')
    g.label('L_slow')
    g(f'ds_read_b128 {vr(KB[0],4)}, v{vKA}')
    for k in range(4):
        g(f'ds_read_b64_tr_b16 {vr(VB[0]+2*k,2)}, v{vVA} offset:{VO[k]}')
    g(f'v_add_u32 v{vKA}, 1024, v{vKA}')
    g(f'v_add_u32 v{vVA}, v{vVI}, v{vVA}')
    g(f's_sub_u32 s{sCnt}, s{sCnt}, 1')
    g('s_waitcnt lgkmcnt(0)')
    g(QK(SX, KB[0], QX, CX))
    g(QK(SY, KB[0], QY, CY))
    g('s_nop 11')
    for i in range(32):
        g(EX(SX + i))
    g('s_nop 1')
    g(PV(OX, VB[0], SX))
    g(PV(OY, VB[0], SY))
    g(PV(OX, VB[0] + 4, SX + 8))
    g(PV(OY, VB[0] + 4, SY + 8))
    g('s_nop 15')
    g(f's_cmp_lg_u32 s{sCnt}, 0')
    g('s_cbranch_scc1 L_slow')
    if tst: g(f'v_rcp_f32 v{vMX}, v{OX+8}')
    g('s_branch L_epi')

    g.raw('.section .rodata,"a"')
    g.raw('.p2align 6')
    g.raw(f'.amdhsa_kernel {NAME}_kernel')
    g.raw(f'  .amdhsa_next_free_vgpr {NV}')
    g.raw(f'  .amdhsa_next_free_sgpr {80 if stamps else 40}')
    g.raw(f'  .amdhsa_accum_offset {(NV+3)//4*4}')
    g.raw('  .amdhsa_group_segment_fixed_size 0')
    g.raw('  .amdhsa_kernarg_size 48')
    g.raw('  .amdhsa_user_sgpr_count 2')
    g.raw('  .amdhsa_user_sgpr_kernarg_segment_ptr 1')
    g.raw('  .amdhsa_system_sgpr_workgroup_id_x 1')
    g.raw('.end_amdhsa_kernel')
    return '\n'.join(g.lines) + '\n'

if __name__ == '__main__':
    out = sys.argv[1] if len(sys.argv) > 1 else f'cdna_kernels/{NAME}.s'
    kw = dict(a.split('=') for a in sys.argv[2:])
    kw = {k: (v if k in ('sched', 'pa', 'sites') else int(v)) for k, v in kw.items()}
    open(out, 'w').write(build(**kw))
```

```python
import struct, sys, math

NAME = 'standalone__fused_io_aware_attn__prompt'
def f32(x):
    return struct.unpack('<I', struct.pack('<f', x))[0]

HEADER = '''; Kernarg layout for this problem (48 bytes, ptrs only, base s[0:1]):
;   offset  40: d_ws      268435456 bytes workspace
'''

class Gen:
    def __init__(self):
        self.lines = []
    def __call__(self, s):
        if isinstance(s, list):
            for x in s: self(x)
        elif s.endswith(':'): self.lines.append(s)
        else: self.lines.append('    ' + s)
    def label(self, s):
        self.lines.append(s + ':')
    def c(self, s):
        self.lines.append('    ; ' + s)
    def raw(self, s):
        self.lines.append(s)

def vr(base, n):
    return f'v[{base}:{base+n-1}]'

def build(x=25, stamps=0, prio=1, qkpos=4, sp1pos=10, st=3, barpos=11,
          sched='r,S,r,O,W0,B,q,r,r,W1,B,r,r,r,r,Wq,Q,W3,B,r,r,r,r,r,r,r,r', pa='5,13,29,61', sites='2:7,7:15', qprio=3, bias=45, oolpos=0, qp=2, bcy=(2, 6), vfirst=0, il=0, ybar=13, tst=1, qm=1, dm=1, km=1):
    loop = 0
    sched = sched.split(',')
    pa = [int(v) for v in pa.split(',')] if pa else []
    sites = [tuple(int(u) for u in v.split(':')) for v in sites.split(',')] if sites else []
    g = Gen()
    nst = [0]
    def stamp_s(real=False, idx=None):
        if not stamps: return []
        if idx is None:
            idx = nst[0]; nst[0] += 1
        return [f's_mem{"real" if real else ""}time s[{40+2*idx}:{41+2*idx}]']
    def stamp(real=False, idx=None):
        g(stamp_s(real, idx))

    SX, SY = 0, 16
    OX, OY = 32, 48
    CX, CY = 64, 80
    QX, QY = 96, 100
    KB = [104, 108]
    VB = [112, 120]
    vKA, vVA, vVI = 128, 129, 130
    vPat, vDma = 131, 132
    vIdx = 133
    vT0, vT1, vT2, vT3 = 134, 135, 136, 137
    vMX, vMY = 138, 140
    vVA0, vLin = 142, 143
    NV = 144
    sQ, sK, sV, sO = 4, 6, 8, 10
    SRD_Q, SRD_KV, SRD_O, SRD_K = 12, 16, 20, 24
    sWave, sHoff, sQoff, sDoff = 28, 29, 30, 31
    sC = 32
    sT0, sT1 = 34, 35
    sCnt, sFlag = 36, 37
    sBias = 3
    sWs = 38
    LDS_V = 65536
    LDS_ONES = 131072
    LDS_TOTAL = 131072 + 8192
    STM = ['', ' nt', ' sc1', ' sc0 sc1', ' sc0 sc1 nt'][st]
    MODS = ['', ' nt', ' sc1', ' sc0 sc1', ' sc0', ' sc0 sc1 nt', ' sc1 nt', ' sc0 nt']
    QM, DM, KM = MODS[qm], MODS[dm], MODS[km]
    VO = [0, 128, 512, 640]
    C = f32(0.25 * math.log2(math.e))

    def dma(off=0):
        return f'buffer_load_dwordx4 v{vDma}, s[{SRD_KV}:{SRD_KV+3}], s{sDoff} offen' + (f' offset:{off}' if off else '') + DM + ' lds'
    issued = []
    guar = []
    done = [-1]
    def dround():
        r = sum(1 for u in issued if u != 'q') // 2
        g(dma()); g(dma(2048 if il else 1024))
        issued.extend([r, r])
        if r < 15:
            g(f's_add_u32 m0, m0, 0x1000')
            g(f's_add_u32 s{sDoff}, s{sDoff}, 0x1000')
    def vm_after(tag):
        i = max(k for k, u in enumerate(issued) if u == tag)
        for u in issued[:i+1]:
            if u != 'q': done[0] = max(done[0], u)
        return len(issued) - 1 - i
    bst = [5, 6]
    def run_sched(toks):
        for tk in toks:
            if tk == 'r': dround()
            elif tk == 'q': qloads(); issued.extend(['q'] * 3)
            elif tk == 'Wq': g(f's_waitcnt vmcnt({vm_after("q")})')
            elif tk == 'Wh':
                assert il and not guar
                g(f's_waitcnt vmcnt({len(issued) - 1 - issued.index(0)}) lgkmcnt(0)')
                done[0] = -0.5
            elif tk[0] == 'W': g(f's_waitcnt vmcnt({vm_after(int(tk[1:]))})' + (' lgkmcnt(0)' if not guar else ''))
            elif tk == 'B':
                if stamps == 2 and len(guar) < 2: stamp(idx=14 + len(guar))
                g('s_barrier')
                if len(guar) < 2: stamp(idx=bst[len(guar)])
                guar.append(done[0] + 1)
            elif tk == 'O':
                assert not guar
                g(f's_cmp_lg_u32 s{sWave}, 7')
                g('s_cbranch_scc1 L_noones')
                g(f'v_lshlrev_b32 v{vT2}, 7, v{vT1}')
                g(f'v_add_u32 v{vT2}, {LDS_ONES}, v{vT2}')
                g(f'v_mov_b32 v{VB[0]}, 0x3f80')
                g(f'v_mov_b32 v{VB[0]+1}, 0')
                g(f'v_mov_b64 {vr(VB[0]+2,2)}, 0')
                g(f'ds_write_b128 v{vT2}, {vr(VB[0],4)}')
                g.label('L_noones')
            else: raise ValueError(tk)
    iS, iQ = sched.index('S'), sched.index('Q')
    assert iS < iQ and sched.count('r') == 16 and sched.count('q') == 1 and sched.index('O') > iS
    def qloads():
        g(f's_mov_b32 s{SRD_Q}, s{sQ}')
        g(f's_and_b32 s{SRD_Q+1}, s{sQ+1}, 0xffff')
        g(f'buffer_load_dwordx4 {vr(QX,4)}, v{vPat}, s[{SRD_Q}:{SRD_Q+3}], s{sQoff} offen{QM}')
        g(f's_mov_b32 s{SRD_K}, s{sK}')
        g(f's_and_b32 s{SRD_K+1}, s{sK+1}, 0xffff')
        g(f'buffer_load_dwordx4 {vr(KB[0],4)}, v{vPat}, s[{SRD_K}:{SRD_K+3}], s{sHoff} offen{KM}')
        g(f'buffer_load_dwordx4 {vr(QY,4)}, v{vPat}, s[{SRD_Q}:{SRD_Q+3}], s{sQoff} offen offset:1024{QM}')
    def QK(S, K, Q, Cc):
        return f'v_mfma_f32_32x32x16_bf16 {vr(S,16)}, {vr(K,4)}, {vr(Q,4)}, ' + (vr(Cc, 16) if Cc is not None else '0')
    def PV(O, V, P):
        return f'v_smfmac_f32_32x32x32_bf16 {vr(O,16)}, {vr(V,4)}, {vr(P,8)}, v{vIdx}'
    def EX(r):
        return f'v_exp_f32 v{r}, v{r}'
    def rdV(tau, k):
        return f'ds_read_b64_tr_b16 {vr(VB[tau%2]+2*k,2)}, v{vVA} offset:{(tau%8)*1024+VO[k]}'
    def rdK(tau):
        return f'ds_read_b128 {vr(KB[tau%2],4)}, v{vKA} offset:{(tau % 8) * 1024 if loop else tau * 1024}'

    g.raw(HEADER + f'; @launch grid=(256,1,1) block=(512,1,1) lds={LDS_TOTAL}')
    g.raw('.amdgcn_target "amdgcn-amd-amdhsa--gfx950"')
    g.raw('.text')
    g.raw(f'.globl {NAME}_kernel')
    g.raw('.p2align 8')
    g.raw(f'.type {NAME}_kernel,@function')
    g.label(f'{NAME}_kernel')
    g('s_load_dwordx8 s[4:11], s[0:1], 0')
    stamp(True); stamp()
    if stamps: g(f's_load_dwordx2 s[{sWs}:{sWs+1}], s[0:1], 40')
    g(f'v_lshrrev_b32 v{vT0}, 6, v0')
    g(f'v_and_b32 v{vT1}, 63, v0')
    g(f'v_readfirstlane_b32 s{sWave}, v{vT0}')
    g('s_cmp_ge_u32 s2, 256')
    g('s_cbranch_scc1 L_end')
    g(f'v_and_b32 v{vT2}, 31, v{vT1}')
    g(f'v_lshlrev_b32 v{vT2}, 5, v{vT2}')
    g(f'v_lshrrev_b32 v{vT3}, 5, v{vT1}')
    g(f'v_lshl_add_u32 v{vPat}, v{vT3}, 4, v{vT2}')
    g(f'v_lshlrev_b32 v{vLin}, 4, v{vT1}')
    g(f's_and_b32 s{sT0}, s2, 7')
    g(f's_lshr_b32 s{sT1}, s2, 5')
    g(f's_lshl3_add_u32 s{sT0}, s{sT1}, s{sT0}')
    g(f's_lshl_b32 s{sHoff}, s{sT0}, 16')
    g(f's_bfe_u32 s{sT1}, s2, 0x20003')
    g(f's_lshl3_add_u32 s{sT1}, s{sT1}, s{sWave}')
    g(f's_lshl_b32 s{sT1}, s{sT1}, 11')
    g(f's_add_u32 s{sQoff}, s{sHoff}, s{sT1}')
    g(f's_mov_b32 s{SRD_Q+2}, 0x400000')
    g(f's_mov_b32 s{SRD_Q+3}, 0x20000')
    g(f's_mov_b32 s{SRD_K+2}, 0x400000')
    g(f's_mov_b32 s{SRD_K+3}, 0x20000')
    g(f's_cmp_lt_u32 s{sWave}, 4')
    g('s_cbranch_scc0 L_first_b')
    g('s_waitcnt lgkmcnt(0)')
    stamp(idx=13)
    qloads()
    g('s_branch L_setup')
    g.label('L_first_b')
    g(f's_and_b32 s{sT0}, s{sWave}, 1')
    g(f's_lshl_b32 s{sT0}, s{sT0}, {10 if il else 11}')
    g(f's_add_u32 s{sDoff}, s{sHoff}, s{sT0}')
    g(f's_mov_b32 s{SRD_KV+2}, 0x400000')
    g(f's_mov_b32 s{SRD_KV+3}, 0x20000')
    g(f's_andn2_b32 s{sT1}, 2, s{sWave}' if vfirst else f's_and_b32 s{sT1}, s{sWave}, 2')
    g(f's_lshl_b32 s{sT1}, s{sT1}, 15')
    g(f's_add_u32 m0, s{sT0}, s{sT1}')
    g(f's_cmp_eq_u32 s{sT1}, 0')
    g(f's_cselect_b64 vcc, -1, 0')
    g(f'v_cndmask_b32 v{vDma}, v{vLin}, v{vPat}, vcc')
    g('s_waitcnt lgkmcnt(0)')
    stamp(idx=13)
    g(f's_cselect_b64 s[{SRD_KV}:{SRD_KV+1}], s[{sK}:{sK+1}], s[{sV}:{sV+1}]')
    g(f's_and_b32 s{SRD_KV+1}, s{SRD_KV+1}, 0xffff')
    run_sched(sched[:iS])
    ool_at = len(g.lines)
    g.label('L_setup')
    g(f's_mov_b32 s{SRD_O}, s{sO}')
    g(f's_and_b32 s{SRD_O+1}, s{sO+1}, 0xffff')
    g(f's_mov_b32 s{SRD_O+2}, 0x400000')
    g(f's_mov_b32 s{SRD_O+3}, 0x20000')
    g(f's_mov_b32 s{sC}, 0x{C:08x}')
    g(f's_mov_b32 s{sC+1}, 0x{C:08x}')
    g(f's_mov_b32 s{sFlag}, 0')
    g(f's_mov_b32 s{sBias}, 0x{f32(float(bias)):08x}')
    g(f'v_bfe_u32 v{vT0}, v{vT1}, 2, 2')
    g(f'v_lshl_add_u32 v{vT0}, v{vT3}, 3, v{vT0}')
    g(f'v_lshlrev_b32 v{vT0}, 5, v{vT0}')
    g(f'v_and_b32 v{vT2}, 1, v{vT1}')
    g(f'v_lshl_add_u32 v{vT0}, v{vT2}, 4, v{vT0}')
    g(f'v_bfe_u32 v{vT2}, v{vT1}, 1, 1')
    g(f'v_lshl_add_u32 v{vT0}, v{vT2}, 3, v{vT0}')
    g(f'v_add_u32 v{vT0}, {LDS_V}, v{vT0}')
    g(f'v_lshlrev_b32 v{vT2}, 3, v{vT2}')
    g(f'v_add_u32 v{vT2}, {LDS_ONES+128}, v{vT2}')
    g(f'v_and_b32 v{vT3}, 16, v{vT1}')
    g(f'v_cmp_eq_u32 vcc, 0, v{vT3}')
    g(f'v_mov_b32 v{vT3}, 8192')
    g(f'v_mov_b32 v{vIdx}, 0xdddddddd')
    g(f'v_cndmask_b32 v{vVA0}, v{vT2}, v{vT0}, vcc')
    g(f'v_cndmask_b32 v{vVI}, 0, v{vT3}, vcc')
    g(f'v_mov_b32 v{vKA}, v{vLin}')
    g(f'v_mov_b32 v{vVA}, v{vVA0}')
    for i in range(16):
        g(f'v_mov_b64 {vr(OX+2*i,2)}, 0')
    if qp:
        g(f'v_mov_b32 v{KB[1]}, 0.5')
        g(f'v_mov_b32 v{KB[1]+1}, 0')
        g(f'v_mov_b64 {vr(KB[1]+2,2)}, 0')
        for i in range(4):
            g(f'v_mov_b64 {vr(VB[1]+2*i,2)}, 0')
    stamp(idx=10)
    g(f's_cmp_lt_u32 s{sWave}, 4')
    g('s_cbranch_scc0 L_loader')
    g('s_waitcnt vmcnt(1)')
    g.label('L_q')
    if prio: g(f's_setprio {qprio}')
    stamp()
    g.c('scale Q by softmax_scale*log2(e); stand-in max taken from the scores of the first keys (less a fixed power-of-two scale)')
    def scaleq(Q, T):
        L = []
        for r in range(4):
            L.append(f'v_lshlrev_b32 v{T+2*r}, 16, v{Q+r}')
            L.append(f'v_and_b32 v{T+2*r+1}, 0xffff0000, v{Q+r}')
        for r in range(4):
            L.append(f'v_pk_mul_f32 {vr(T+2*r,2)}, {vr(T+2*r,2)}, s[{sC}:{sC+1}]')
        for r in range(4):
            L.append(f'v_cvt_pk_bf16_f32 v{Q+r}, v{T+2*r}, v{T+2*r+1}')
        return L
    def max16(S, M):
        L = [f'v_max3_f32 v{M}, v{S}, v{S+1}, v{S+2}']
        for i in range(6):
            L.append(f'v_max3_f32 v{M}, v{S+3+2*i}, v{S+4+2*i}, v{M}')
        L.append(f'v_sub_f32 v{M+1}, s{sBias}, v{M}')
        L.append(f'v_sub_f32 v{M}, s{sBias}, v{M}')
        return L
    def cfill(M, Cc):
        L = [f'v_min_f32 v{Cc}, v{M}, v{M+1}', f'v_min_f32 v{Cc+1}, v{M}, v{M+1}']
        for i in range(1, 8):
            L.append(f'v_mov_b64 {vr(Cc+2*i,2)}, {vr(Cc,2)}')
        return L
    sy = scaleq(QY, CY)
    mx, my = max16(SX, vMX), max16(SY, vMY)
    g(scaleq(QX, CX))
    g('s_cbranch_scc0 L_qy2')
    g('s_waitcnt vmcnt(0)')
    g.label('L_qy2')
    def BC(D, Bq, Cc):
        return QK(D, KB[1], Bq, Cc)
    def offs(S, T):
        return [f'v_max3_f32 v{T}, v{S}, v{S+1}, v{S+2}', f'v_sub_f32 v{T}, s{sBias}, v{T}', f'v_and_b32 v{T}, 0xffff0000, v{T}']
    if qp == 2:
        g(sy[:2])
        g(QK(SX, KB[0], QX, None))
        g(sy[2:14])
        g(offs(SX, VB[1]))
        g(sy[14:])
        g(BC(SX, VB[1], SX))
        g('s_nop 0')
        g(QK(SY, KB[0], QY, None))
        g('s_nop 3')
    elif qp:
        g(sy[:2])
        g(QK(SX, KB[0], QX, None))
        g(sy[2:])
        g(offs(SX, VB[1]))
        g(QK(SY, KB[0], QY, None))
        g('s_nop 0')
        g(BC(SX, VB[1], SX))
        g(BC(CX, VB[1], None))
        g('s_nop 7')
        g('s_nop 0')
        g(offs(SY, VB[1] + 4))
    else:
        g(sy[:2])
        g(QK(SX, KB[0], QX, None))
        g(sy[2:])
        g(mx[:2])
        g(QK(SY, KB[0], QY, None))
        g(mx[2:])
        g('s_nop 1')
        g(f'v_permlane32_swap_b32 v{vMX}, v{vMX+1}')
        g('s_nop 0')
        g(cfill(vMX, CX))
        g(my[:2])
        g(QK(SX, KB[0], QX, CX))
        g(my[2:])
        g('s_nop 1')
        g(f'v_permlane32_swap_b32 v{vMY}, v{vMY+1}')
        g('s_nop 0')
        g(cfill(vMY, CY))
    g('s_setprio 2' if qp != 2 else 's_nop 0')
    g('s_cbranch_scc0 L_prio_b')
    g.label('L_go')
    stamp()

    g.c('X phase, tile 0')
    for i in range(16):
        g(EX(SX + i))
        if not qp and i == 2: g(QK(SY, KB[0], QY, CY))
        if qp == 1 and i == bcy[0]: g(BC(SY, VB[1] + 4, SY))
        if qp == 1 and i == bcy[1]: g(BC(CY, VB[1] + 4, None))
        if qp == 2 and i == 1: g(BC(CX, VB[1], None))
        if qp == 2 and i == 6: g(offs(SY, VB[1] + 4))
        if qp == 2 and i == 8: g(BC(SY, VB[1] + 4, SY))
        if qp == 2 and i == 12: g(BC(CY, VB[1] + 4, None))
        if i == barpos:
            if qp == 2: g('s_setprio 1')
            g('s_cbranch_scc0 L_nobar')
            if qp == 2: g('s_setprio 2')
            if stamps == 2: stamp(idx=14)
            g('s_barrier')
            g.label('L_nobar')
            stamp()
            g([rdV(0, 0), rdV(0, 1)])
        if i == min(barpos + 1, 15): g([rdV(0, 2), rdV(0, 3)])
        if i == min(barpos + 2, 15): g(rdK(1))
    g.c('Y phase, tile 0')
    for i in range(16):
        g(EX(SY + i))
        if i == 1: g(['s_waitcnt lgkmcnt(3)', PV(OX, VB[0], SX), rdV(1, 0)])
        if i == 4: g(['s_waitcnt lgkmcnt(2)', PV(OX, VB[0] + 4, SX + 8), rdV(1, 1)])
        if i == 7: g(['s_waitcnt lgkmcnt(2)', QK(SX, KB[1], QX, CX), rdV(1, 2)])
        if i == 11: g([PV(OY, VB[0], SY), 's_nop 0', rdV(1, 3)])
        if i == ybar and 'Wh' in sched: g(['s_cbranch_scc0 L_nobar2', 's_barrier', 'L_nobar2:'])

    def phase(p, extra=None):
        extra = extra or {}
        t = p // 2
        isX = (p % 2 == 0)
        b = t % 2; nb = 1 - b
        last = (t == 63)
        sl = {'a0': [], 'a1': [], 'a2': []}
        if isX:
            S, Sp, O, Op, Cp, Qp, Kq = SX, SY, OX, OY, CY, QY, KB[b]
            H = VB[nb] + 4
            sl['a0'] = ['s_waitcnt lgkmcnt(2)']
            if not last:
                sl['a0'] += [rdK(t + 1)]
                sl['a1'] = [rdV(t + 1, 0)]
                sl['a2'] = ['s_waitcnt lgkmcnt(2)', rdV(t + 1, 1)]
            else:
                sl['a2'] = ['s_waitcnt lgkmcnt(0)']
        else:
            S, Sp, O, Op, Cp, Qp, Kq = SY, SX, OY, OX, CX, QX, (KB[nb] if not last else None)
            H = VB[b] + 4
            if not last:
                sl['a0'] = ['s_waitcnt lgkmcnt(2)', rdV(t + 1, 2)]
                sl['a1'] = [rdV(t + 1, 3)]
                if (t + 2) % 8 == 0 and t + 2 < 64:
                    sl['a2'] = [f'v_add_u32 v{vVA}, v{vVI}, v{vVA}']
                    if loop: sl['a2'] += [f'v_add_u32 v{vKA}, 8192, v{vKA}']
        L = VB[b]
        for k, v in extra.items():
            if k.endswith('pre'): sl[k[:2]] = v + sl[k[:2]]
            else: sl[k] = sl.get(k, []) + v
        g.c(f'{"X" if isX else "Y"} phase, tile {t}')
        for i in range(16):
            g(EX(S + i))
            if i == 1:
                g(PV(Op, H, Sp + 8)); g(sl['a0'])
            if i == qkpos:
                if Kq is not None: g(QK(Sp, Kq, Qp, Cp))
                g(sl['a1'])
            if i == sp1pos:
                g(PV(O, L, S)); g(sl['a2'])

    if stamps: nst[0] += 2
    main_lines = g.lines
    g.lines = []
    g.label('L_loader')
    run_sched(sched[iS+1:iQ])
    g(f's_cmp_lt_u32 s{sWave}, 4')
    g('s_branch L_q')
    g.label('L_prio_b')
    run_sched(sched[iQ+1:])
    if qp != 2: g('s_setprio 1')
    g(f's_cmp_lt_u32 s{sWave}, 4')
    g('s_branch L_go')
    nb_loader = len(guar)
    assert nb_loader >= 1
    spec = {}
    for (p, r) in sites:
        assert p <= 8 * guar[-1] - 3 and p >= 2, (p, guar)
        g.label(f'L_site{p}')
        g(f's_waitcnt vmcnt({vm_after(r)})')
        k = len(guar)
        if stamps == 2 and k < 2: stamp(idx=14 + k)
        g('s_barrier')
        if k < 2: stamp(idx=bst[k])
        elif k < 4: stamp(idx=[12, 11][k-2])
        guar.append(done[0] + 1)
        g(f's_branch L_back{p}')
        spec[p] = [f's_cbranch_scc0 L_site{p}', f'L_back{p}:']
    ool = g.lines
    g.lines = main_lines
    if 'Wh' in sched:
        assert guar[0] == 0.5 and nb_loader >= 2
        guar = guar[1:]
    assert guar[-1] == 16 and len(guar) == len(pa) + 1, (guar, pa)
    for k, p in enumerate(pa):
        assert 2 <= p <= 8 * guar[k] - 3 and (k == 0 or p > pa[k-1]), (p, guar)
        body = (stamp_s(idx=15) if (stamps == 2 and k == 0) else []) + ['s_barrier'] + (stamp_s(idx=[5, 6, 11][k]) if k < 3 else [])
        if p in spec:
            spec[p] = [spec[p][0]] + body + [spec[p][1]]
        else:
            spec[p] = [f's_cbranch_scc0 L_skip{p}'] + body + [f'L_skip{p}:']
    px = 128 - x
    assert px not in spec
    if prio: spec[px] = [f's_cbranch_scc0 L_skip{px}', 's_setprio 0', f'L_skip{px}:']
    for p in range(2, 128):
        phase(p, {'a2pre': spec[p]} if p in spec else {})

    stamp()
    g('s_setprio 3' if prio else 's_nop 0')
    LO, HI = 0x35800000, 0x7b800000
    def chk(O, T):
        return [f'v_pk_add_f32 {vr(T,2)}, {vr(O,2)}, {vr(O+2,2)}',
                f'v_pk_add_f32 {vr(T+2,2)}, {vr(O+4,2)}, {vr(O+6,2)}',
                f'v_pk_add_f32 {vr(T,2)}, {vr(T,2)}, {vr(T+2,2)}',
                f'v_add_f32 v{T}, v{T}, v{T+1}',
                f'v_fma_f32 v{T}, v{T}, 0, v{O+8}',
                f'v_subrev_u32 v{T}, 0x{LO:08x}, v{T}']
    def fin(O, M, P):
        for i in range(4):
            g(f'v_pk_mul_f32 {vr(O+2*i,2)}, {vr(O+2*i,2)}, {vr(M,2)} op_sel_hi:[1,0]')
        for i in range(4):
            g(f'v_cvt_pk_bf16_f32 v{P+i}, v{O+2*i}, v{O+2*i+1}')
    stX = f'buffer_store_dwordx4 {vr(SX+4,4)}, v{vPat}, s[{SRD_O}:{SRD_O+3}], s{sQoff} offen{STM}'
    stY = f'buffer_store_dwordx4 {vr(SX+12,4)}, v{vPat}, s[{SRD_O}:{SRD_O+3}], s{sQoff} offen offset:1024{STM}'
    if tst:
        g(f'v_rcp_f32 v{vMX}, v{OX+8}')
        g(PV(OY, VB[1] + 4, SY + 8))
        g.label('L_epi')
        cx = chk(OX, SX)
        fin(OX, vMX, SX+4)
        g(stX)
        g(cx[:3])
        g(f'v_rcp_f32 v{vMY}, v{OY+8}')
        g(cx[3])
        fin(OY, vMY, SX+12)
        g(stY)
        g(f'v_mov_b32 v{vT2}, 0x{HI-LO:08x}')
        g(cx[4:])
        g(chk(OY, SX+8))
        g(f'v_max_u32 v{SX}, v{SX}, v{SX+8}')
        g(f'v_cmp_ge_u32 vcc, v{SX}, v{vT2}')
        g('s_cbranch_vccnz L_redo')
        g.label('L_store')
    else:
        g(f'v_mov_b32 v{vT2}, 0x{HI-LO:08x}')
        g(PV(OY, VB[1] + 4, SY + 8))
        g.label('L_epi')
        g(f'v_rcp_f32 v{vMX}, v{OX+8}')
        g(chk(OX, SX))
        g(f'v_cmp_ge_u32 s[{sT0}:{sT0+1}], v{SX}, v{vT2}')
        fin(OX, vMX, SX+4)
        g(f'v_rcp_f32 v{vMY}, v{OY+8}')
        g(chk(OY, SX+8))
        g(f'v_cmp_ge_u32 vcc, v{SX+8}, v{vT2}')
        fin(OY, vMY, SX+12)
        g(f's_or_b64 s[{sT0}:{sT0+1}], s[{sT0}:{sT0+1}], vcc')
        g('s_cbranch_scc1 L_redo')
        g.label('L_store')
        g(stX)
        g(stY)
    if stamps:
        g('s_waitcnt vmcnt(0)')
        stamp(); stamp(True)
        g('s_waitcnt lgkmcnt(0)')
        g(f's_mov_b32 s12, s{sWs}'); g(f's_and_b32 s13, s{sWs+1}, 0xffff'); g('s_mov_b32 s14, 0x1000000'); g('s_mov_b32 s15, 0x20000')
        g(f's_lshl_b32 s32, s2, 3'); g(f's_add_u32 s32, s32, s{sWave}'); g('s_lshl_b32 s32, s32, 6')
        g('s_mov_b64 exec, 1')
        g('v_mov_b32 v0, 0')
        for i in list(range(nst[0])) + [10, 11, 12, 13] + ([14, 15] if stamps == 2 else []):
            g(f'v_mov_b32 v1, s{40+2*i}')
            g(f'buffer_store_dword v1, v0, s[12:15], s32 offen offset:{4*i}')
        if stamps == 1:
            g('s_getreg_b32 s33, hwreg(HW_REG_XCC_ID)')
            g('v_mov_b32 v1, s33')
            g(f'buffer_store_dword v1, v0, s[12:15], s32 offen offset:{4*15}')
            g('s_getreg_b32 s33, hwreg(HW_REG_HW_ID)')
            g('v_mov_b32 v1, s33')
            g(f'buffer_store_dword v1, v0, s[12:15], s32 offen offset:{4*14}')
    g.label('L_end')
    g('s_endpgm')

    if oolpos: g.lines[ool_at:ool_at] = ['    s_branch L_setup'] + ool
    else: g.lines.extend(ool)

    g.label('L_redo')
    g(f's_cmp_lg_u32 s{sFlag}, 0')
    g('s_cbranch_scc1 L_store')
    g(f's_mov_b32 s{sFlag}, 1')
    g('s_waitcnt vmcnt(0)')
    g(f's_mov_b32 s{sCnt}, 64')
    g(f'v_mov_b32 v{vKA}, v{vLin}')
    g(f'v_mov_b32 v{vMX}, 0xff800000')
    g(f'v_mov_b32 v{vMY}, 0xff800000')
    g.label('L_maxloop')
    g(f'ds_read_b128 {vr(KB[0],4)}, v{vKA}')
    g(f'v_add_u32 v{vKA}, 1024, v{vKA}')
    g(f's_sub_u32 s{sCnt}, s{sCnt}, 1')
    g('s_waitcnt lgkmcnt(0)')
    g(QK(SX, KB[0], QX, None))
    g(QK(SY, KB[0], QY, None))
    g('s_nop 11')
    for i in range(8):
        g(f'v_max3_f32 v{vMX}, v{SX+2*i}, v{SX+2*i+1}, v{vMX}')
    g('s_nop 3')
    for i in range(8):
        g(f'v_max3_f32 v{vMY}, v{SY+2*i}, v{SY+2*i+1}, v{vMY}')
    g(f's_cmp_lg_u32 s{sCnt}, 0')
    g('s_cbranch_scc1 L_maxloop')
    g(f'v_mov_b32 v{vT0}, v{vMX}')
    g(f'v_mov_b32 v{vT1}, v{vMY}')
    g(f'v_mov_b32 v{vKA}, v{vLin}')
    g(f'v_mov_b32 v{vVA}, v{vVA0}')
    g(f'v_permlane32_swap_b32 v{vMX}, v{vT0}')
    g(f'v_permlane32_swap_b32 v{vMY}, v{vT1}')
    g(f'v_lshrrev_b32 v{vVI}, 3, v{vVI}')
    g(f'v_mov_b32 v{vT3}, 0x41300000')
    g(f'v_max_f32 v{vMX}, v{vMX}, v{vT0}')
    g(f'v_max_f32 v{vMY}, v{vMY}, v{vT1}')
    g(f'v_add_f32 v{vMX}, v{vT3}, v{vMX}')
    g(f'v_add_f32 v{vMY}, v{vT3}, v{vMY}')
    for i in range(16):
        g(f'v_sub_f32 v{CX+i}, 0, v{vMX}')
        g(f'v_sub_f32 v{CY+i}, 0, v{vMY}')
        g(f'v_mov_b64 {vr(OX+2*i,2)}, 0')
    g(f's_mov_b32 s{sCnt}, 64')
    g.label('L_slow')
    g(f'ds_read_b128 {vr(KB[0],4)}, v{vKA}')
    for k in range(4):
        g(f'ds_read_b64_tr_b16 {vr(VB[0]+2*k,2)}, v{vVA} offset:{VO[k]}')
    g(f'v_add_u32 v{vKA}, 1024, v{vKA}')
    g(f'v_add_u32 v{vVA}, v{vVI}, v{vVA}')
    g(f's_sub_u32 s{sCnt}, s{sCnt}, 1')
    g('s_waitcnt lgkmcnt(0)')
    g(QK(SX, KB[0], QX, CX))
    g(QK(SY, KB[0], QY, CY))
    g('s_nop 11')
    for i in range(32):
        g(EX(SX + i))
    g('s_nop 1')
    g(PV(OX, VB[0], SX))
    g(PV(OY, VB[0], SY))
    g(PV(OX, VB[0] + 4, SX + 8))
    g(PV(OY, VB[0] + 4, SY + 8))
    g('s_nop 15')
    g(f's_cmp_lg_u32 s{sCnt}, 0')
    g('s_cbranch_scc1 L_slow')
    if tst: g(f'v_rcp_f32 v{vMX}, v{OX+8}')
    g('s_branch L_epi')

    g.raw('.section .rodata,"a"')
    g.raw('.p2align 6')
    g.raw(f'.amdhsa_kernel {NAME}_kernel')
    g.raw(f'  .amdhsa_next_free_vgpr {NV}')
    g.raw(f'  .amdhsa_next_free_sgpr {80 if stamps else 40}')
    g.raw(f'  .amdhsa_accum_offset {(NV+3)//4*4}')
    g.raw('  .amdhsa_group_segment_fixed_size 0')
    g.raw('  .amdhsa_kernarg_size 48')
    g.raw('  .amdhsa_user_sgpr_count 2')
    g.raw('  .amdhsa_user_sgpr_kernarg_segment_ptr 1')
    g.raw('  .amdhsa_system_sgpr_workgroup_id_x 1')
    g.raw('.end_amdhsa_kernel')
    return '\n'.join(g.lines) + '\n'

if __name__ == '__main__':
    out = sys.argv[1] if len(sys.argv) > 1 else f'cdna_kernels/{NAME}.s'
    kw = dict(a.split('=') for a in sys.argv[2:])
    kw = {k: (v if k in ('sched', 'pa', 'sites') else int(v)) for k, v in kw.items()}
    open(out, 'w').write(build(**kw))
```

```python
import struct, sys, math

NAME = 'standalone__fused_io_aware_attn__prompt'
def f32(x):
    return struct.unpack('<I', struct.pack('<f', x))[0]

HEADER = '''; Kernarg layout for this problem (48 bytes, ptrs only, base s[0:1]):
;   offset  40: d_ws      268435456 bytes workspace
'''

class Gen:
    def __init__(self):
        self.lines = []
    def __call__(self, s):
        if isinstance(s, list):
            for x in s: self(x)
        elif s.endswith(':'): self.lines.append(s)
        else: self.lines.append('    ' + s)
    def label(self, s):
        self.lines.append(s + ':')
    def c(self, s):
        self.lines.append('    ; ' + s)
    def raw(self, s):
        self.lines.append(s)

def vr(base, n):
    return f'v[{base}:{base+n-1}]'

def build(x=25, stamps=0, prio=1, qkpos=4, sp1pos=10, st=3, barpos=11,
          sched='r,S,r,O,W0,B,q,r,r,W1,B,r,r,r,r,Wq,Q,W3,B,r,r,r,r,r,r,r,r', pa='5,13,29,61', sites='2:7,7:15', qprio=3, bias=45, oolpos=0, qp=2, bcy=(2, 6), vfirst=0, il=0, ybar=13, tst=1, qm=1, dm=1, km=1, dbg=0):
    loop = 0
    sched = sched.split(',')
    pa = [int(v) for v in pa.split(',')] if pa else []
    sites = [tuple(int(u) for u in v.split(':')) for v in sites.split(',')] if sites else []
    g = Gen()
    nst = [0]
    def stamp_s(real=False, idx=None):
        if not stamps: return []
        if idx is None:
            idx = nst[0]; nst[0] += 1
        return [f's_mem{"real" if real else ""}time s[{40+2*idx}:{41+2*idx}]']
    def stamp(real=False, idx=None):
        g(stamp_s(real, idx))

    SX, SY = 0, 16
    OX, OY = 32, 48
    CX, CY = 64, 80
    QX, QY = 96, 100
    KB = [104, 108]
    VB = [112, 120]
    vKA, vVA, vVI = 128, 129, 130
    vPat, vDma = 131, 132
    vIdx = 133
    vT0, vT1, vT2, vT3 = 134, 135, 136, 137
    vMX, vMY = 138, 140
    vVA0, vLin = 142, 143
    NV = 144
    sQ, sK, sV, sO = 4, 6, 8, 10
    SRD_Q, SRD_KV, SRD_O, SRD_K = 12, 16, 20, 24
    sWave, sHoff, sQoff, sDoff = 28, 29, 30, 31
    sC = 32
    sT0, sT1 = 34, 35
    sCnt, sFlag = 36, 37
    sBias = 3
    sWs = 38
    LDS_V = 65536
    LDS_ONES = 131072
    LDS_TOTAL = 131072 + 8192
    STM = ['', ' nt', ' sc1', ' sc0 sc1', ' sc0 sc1 nt'][st]
    MODS = ['', ' nt', ' sc1', ' sc0 sc1', ' sc0', ' sc0 sc1 nt', ' sc1 nt', ' sc0 nt']
    QM, DM, KM = MODS[qm], MODS[dm], MODS[km]
    VO = [0, 128, 512, 640]
    C = f32(0.25 * math.log2(math.e))

    def dma(off=0):
        return f'buffer_load_dwordx4 v{vDma}, s[{SRD_KV}:{SRD_KV+3}], s{sDoff} offen' + (f' offset:{off}' if off else '') + DM + ' lds'
    issued = []
    guar = []
    done = [-1]
    def dround():
        r = sum(1 for u in issued if u != 'q') // 2
        g(dma()); g(dma(2048 if il else 1024))
        issued.extend([r, r])
        if r < 15:
            g(f's_add_u32 m0, m0, 0x1000')
            g(f's_add_u32 s{sDoff}, s{sDoff}, 0x1000')
    def vm_after(tag):
        i = max(k for k, u in enumerate(issued) if u == tag)
        for u in issued[:i+1]:
            if u != 'q': done[0] = max(done[0], u)
        return len(issued) - 1 - i
    bst = [5, 6]
    def run_sched(toks):
        for tk in toks:
            if tk == 'r': dround()
            elif tk == 'q': qloads(); issued.extend(['q'] * 3)
            elif tk == 'Wq': g(f's_waitcnt vmcnt({vm_after("q")})')
            elif tk == 'Wh':
                assert il and not guar
                g(f's_waitcnt vmcnt({len(issued) - 1 - issued.index(0)}) lgkmcnt(0)')
                done[0] = -0.5
            elif tk[0] == 'W': g(f's_waitcnt vmcnt({vm_after(int(tk[1:]))})' + (' lgkmcnt(0)' if not guar else ''))
            elif tk == 'B':
                if stamps == 2 and len(guar) < 2: stamp(idx=14 + len(guar))
                g('s_barrier')
                if len(guar) < 2: stamp(idx=bst[len(guar)])
                guar.append(done[0] + 1)
            elif tk == 'O':
                assert not guar
                g(f's_cmp_lg_u32 s{sWave}, 7')
                g('s_cbranch_scc1 L_noones')
                g(f'v_lshlrev_b32 v{vT2}, 7, v{vT1}')
                g(f'v_add_u32 v{vT2}, {LDS_ONES}, v{vT2}')
                g(f'v_mov_b32 v{VB[0]}, 0x3f80')
                g(f'v_mov_b32 v{VB[0]+1}, 0')
                g(f'v_mov_b64 {vr(VB[0]+2,2)}, 0')
                g(f'ds_write_b128 v{vT2}, {vr(VB[0],4)}')
                g.label('L_noones')
            else: raise ValueError(tk)
    iS, iQ = sched.index('S'), sched.index('Q')
    assert iS < iQ and sched.count('r') == 16 and sched.count('q') == 1 and sched.index('O') > iS
    def qloads():
        g(f's_mov_b32 s{SRD_Q}, s{sQ}')
        g(f's_and_b32 s{SRD_Q+1}, s{sQ+1}, 0xffff')
        g(f'buffer_load_dwordx4 {vr(QX,4)}, v{vPat}, s[{SRD_Q}:{SRD_Q+3}], s{sQoff} offen{QM}')
        g(f's_mov_b32 s{SRD_K}, s{sK}')
        g(f's_and_b32 s{SRD_K+1}, s{sK+1}, 0xffff')
        g(f'buffer_load_dwordx4 {vr(KB[0],4)}, v{vPat}, s[{SRD_K}:{SRD_K+3}], s{sHoff} offen{KM}')
        g(f'buffer_load_dwordx4 {vr(QY,4)}, v{vPat}, s[{SRD_Q}:{SRD_Q+3}], s{sQoff} offen offset:1024{QM}')
    def QK(S, K, Q, Cc):
        return f'v_mfma_f32_32x32x16_bf16 {vr(S,16)}, {vr(K,4)}, {vr(Q,4)}, ' + (vr(Cc, 16) if Cc is not None else '0')
    def PV(O, V, P):
        return f'v_smfmac_f32_32x32x32_bf16 {vr(O,16)}, {vr(V,4)}, {vr(P,8)}, v{vIdx}'
    def EX(r):
        return f'v_exp_f32 v{r}, v{r}'
    def rdV(tau, k):
        return f'ds_read_b64_tr_b16 {vr(VB[tau%2]+2*k,2)}, v{vVA} offset:{(tau%8)*1024+VO[k]}'
    def rdK(tau):
        return f'ds_read_b128 {vr(KB[tau%2],4)}, v{vKA} offset:{(tau % 8) * 1024 if loop else tau * 1024}'

    g.raw(HEADER + f'; @launch grid=(256,1,1) block=(512,1,1) lds={LDS_TOTAL}')
    g.raw('.amdgcn_target "amdgcn-amd-amdhsa--gfx950"')
    g.raw('.text')
    g.raw(f'.globl {NAME}_kernel')
    g.raw('.p2align 8')
    g.raw(f'.type {NAME}_kernel,@function')
    g.label(f'{NAME}_kernel')
    g('s_load_dwordx8 s[4:11], s[0:1], 0')
    stamp(True); stamp()
    if dbg:
        g('s_memrealtime s[40:41]'); g('s_memtime s[42:43]')
        g('s_load_dwordx2 s[38:39], s[0:1], 32')
    if stamps: g(f's_load_dwordx2 s[{sWs}:{sWs+1}], s[0:1], 40')
    g(f'v_lshrrev_b32 v{vT0}, 6, v0')
    g(f'v_and_b32 v{vT1}, 63, v0')
    g(f'v_readfirstlane_b32 s{sWave}, v{vT0}')
    g('s_cmp_ge_u32 s2, 256')
    g('s_cbranch_scc1 L_end')
    g(f'v_and_b32 v{vT2}, 31, v{vT1}')
    g(f'v_lshlrev_b32 v{vT2}, 5, v{vT2}')
    g(f'v_lshrrev_b32 v{vT3}, 5, v{vT1}')
    g(f'v_lshl_add_u32 v{vPat}, v{vT3}, 4, v{vT2}')
    g(f'v_lshlrev_b32 v{vLin}, 4, v{vT1}')
    g(f's_and_b32 s{sT0}, s2, 7')
    g(f's_lshr_b32 s{sT1}, s2, 5')
    g(f's_lshl3_add_u32 s{sT0}, s{sT1}, s{sT0}')
    g(f's_lshl_b32 s{sHoff}, s{sT0}, 16')
    g(f's_bfe_u32 s{sT1}, s2, 0x20003')
    g(f's_lshl3_add_u32 s{sT1}, s{sT1}, s{sWave}')
    g(f's_lshl_b32 s{sT1}, s{sT1}, 11')
    g(f's_add_u32 s{sQoff}, s{sHoff}, s{sT1}')
    g(f's_mov_b32 s{SRD_Q+2}, 0x400000')
    g(f's_mov_b32 s{SRD_Q+3}, 0x20000')
    g(f's_mov_b32 s{SRD_K+2}, 0x400000')
    g(f's_mov_b32 s{SRD_K+3}, 0x20000')
    g(f's_cmp_lt_u32 s{sWave}, 4')
    g('s_cbranch_scc0 L_first_b')
    g('s_waitcnt lgkmcnt(0)')
    stamp(idx=13)
    qloads()
    g('s_branch L_setup')
    g.label('L_first_b')
    g(f's_and_b32 s{sT0}, s{sWave}, 1')
    g(f's_lshl_b32 s{sT0}, s{sT0}, {10 if il else 11}')
    g(f's_add_u32 s{sDoff}, s{sHoff}, s{sT0}')
    g(f's_mov_b32 s{SRD_KV+2}, 0x400000')
    g(f's_mov_b32 s{SRD_KV+3}, 0x20000')
    g(f's_andn2_b32 s{sT1}, 2, s{sWave}' if vfirst else f's_and_b32 s{sT1}, s{sWave}, 2')
    g(f's_lshl_b32 s{sT1}, s{sT1}, 15')
    g(f's_add_u32 m0, s{sT0}, s{sT1}')
    g(f's_cmp_eq_u32 s{sT1}, 0')
    g(f's_cselect_b64 vcc, -1, 0')
    g(f'v_cndmask_b32 v{vDma}, v{vLin}, v{vPat}, vcc')
    g('s_waitcnt lgkmcnt(0)')
    stamp(idx=13)
    g(f's_cselect_b64 s[{SRD_KV}:{SRD_KV+1}], s[{sK}:{sK+1}], s[{sV}:{sV+1}]')
    g(f's_and_b32 s{SRD_KV+1}, s{SRD_KV+1}, 0xffff')
    run_sched(sched[:iS])
    ool_at = len(g.lines)
    g.label('L_setup')
    g(f's_mov_b32 s{SRD_O}, s{sO}')
    g(f's_and_b32 s{SRD_O+1}, s{sO+1}, 0xffff')
    g(f's_mov_b32 s{SRD_O+2}, 0x400000')
    g(f's_mov_b32 s{SRD_O+3}, 0x20000')
    g(f's_mov_b32 s{sC}, 0x{C:08x}')
    g(f's_mov_b32 s{sC+1}, 0x{C:08x}')
    g(f's_mov_b32 s{sFlag}, 0')
    g(f's_mov_b32 s{sBias}, 0x{f32(float(bias)):08x}')
    g(f'v_bfe_u32 v{vT0}, v{vT1}, 2, 2')
    g(f'v_lshl_add_u32 v{vT0}, v{vT3}, 3, v{vT0}')
    g(f'v_lshlrev_b32 v{vT0}, 5, v{vT0}')
    g(f'v_and_b32 v{vT2}, 1, v{vT1}')
    g(f'v_lshl_add_u32 v{vT0}, v{vT2}, 4, v{vT0}')
    g(f'v_bfe_u32 v{vT2}, v{vT1}, 1, 1')
    g(f'v_lshl_add_u32 v{vT0}, v{vT2}, 3, v{vT0}')
    g(f'v_add_u32 v{vT0}, {LDS_V}, v{vT0}')
    g(f'v_lshlrev_b32 v{vT2}, 3, v{vT2}')
    g(f'v_add_u32 v{vT2}, {LDS_ONES+128}, v{vT2}')
    g(f'v_and_b32 v{vT3}, 16, v{vT1}')
    g(f'v_cmp_eq_u32 vcc, 0, v{vT3}')
    g(f'v_mov_b32 v{vT3}, 8192')
    g(f'v_mov_b32 v{vIdx}, 0xdddddddd')
    g(f'v_cndmask_b32 v{vVA0}, v{vT2}, v{vT0}, vcc')
    g(f'v_cndmask_b32 v{vVI}, 0, v{vT3}, vcc')
    g(f'v_mov_b32 v{vKA}, v{vLin}')
    g(f'v_mov_b32 v{vVA}, v{vVA0}')
    for i in range(16):
        g(f'v_mov_b64 {vr(OX+2*i,2)}, 0')
    if qp:
        g(f'v_mov_b32 v{KB[1]}, 0.5')
        g(f'v_mov_b32 v{KB[1]+1}, 0')
        g(f'v_mov_b64 {vr(KB[1]+2,2)}, 0')
        for i in range(4):
            g(f'v_mov_b64 {vr(VB[1]+2*i,2)}, 0')
    stamp(idx=10)
    g(f's_cmp_lt_u32 s{sWave}, 4')
    g('s_cbranch_scc0 L_loader')
    g('s_waitcnt vmcnt(1)')
    g.label('L_q')
    if prio: g(f's_setprio {qprio}')
    stamp()
    g.c('scale Q by softmax_scale*log2(e); stand-in max taken from the scores of the first keys (less a fixed power-of-two scale)')
    def scaleq(Q, T):
        L = []
        for r in range(4):
            L.append(f'v_lshlrev_b32 v{T+2*r}, 16, v{Q+r}')
            L.append(f'v_and_b32 v{T+2*r+1}, 0xffff0000, v{Q+r}')
        for r in range(4):
            L.append(f'v_pk_mul_f32 {vr(T+2*r,2)}, {vr(T+2*r,2)}, s[{sC}:{sC+1}]')
        for r in range(4):
            L.append(f'v_cvt_pk_bf16_f32 v{Q+r}, v{T+2*r}, v{T+2*r+1}')
        return L
    def max16(S, M):
        L = [f'v_max3_f32 v{M}, v{S}, v{S+1}, v{S+2}']
        for i in range(6):
            L.append(f'v_max3_f32 v{M}, v{S+3+2*i}, v{S+4+2*i}, v{M}')
        L.append(f'v_sub_f32 v{M+1}, s{sBias}, v{M}')
        L.append(f'v_sub_f32 v{M}, s{sBias}, v{M}')
        return L
    def cfill(M, Cc):
        L = [f'v_min_f32 v{Cc}, v{M}, v{M+1}', f'v_min_f32 v{Cc+1}, v{M}, v{M+1}']
        for i in range(1, 8):
            L.append(f'v_mov_b64 {vr(Cc+2*i,2)}, {vr(Cc,2)}')
        return L
    sy = scaleq(QY, CY)
    mx, my = max16(SX, vMX), max16(SY, vMY)
    g(scaleq(QX, CX))
    g('s_cbranch_scc0 L_qy2')
    g('s_waitcnt vmcnt(0)')
    g.label('L_qy2')
    def BC(D, Bq, Cc):
        return QK(D, KB[1], Bq, Cc)
    def offs(S, T):
        return [f'v_max3_f32 v{T}, v{S}, v{S+1}, v{S+2}', f'v_sub_f32 v{T}, s{sBias}, v{T}', f'v_and_b32 v{T}, 0xffff0000, v{T}']
    if qp == 2:
        g(sy[:2])
        g(QK(SX, KB[0], QX, None))
        g(sy[2:14])
        g(offs(SX, VB[1]))
        g(sy[14:])
        g(BC(SX, VB[1], SX))
        g('s_nop 0')
        g(QK(SY, KB[0], QY, None))
        g('s_nop 3')
    elif qp:
        g(sy[:2])
        g(QK(SX, KB[0], QX, None))
        g(sy[2:])
        g(offs(SX, VB[1]))
        g(QK(SY, KB[0], QY, None))
        g('s_nop 0')
        g(BC(SX, VB[1], SX))
        g(BC(CX, VB[1], None))
        g('s_nop 7')
        g('s_nop 0')
        g(offs(SY, VB[1] + 4))
    else:
        g(sy[:2])
        g(QK(SX, KB[0], QX, None))
        g(sy[2:])
        g(mx[:2])
        g(QK(SY, KB[0], QY, None))
        g(mx[2:])
        g('s_nop 1')
        g(f'v_permlane32_swap_b32 v{vMX}, v{vMX+1}')
        g('s_nop 0')
        g(cfill(vMX, CX))
        g(my[:2])
        g(QK(SX, KB[0], QX, CX))
        g(my[2:])
        g('s_nop 1')
        g(f'v_permlane32_swap_b32 v{vMY}, v{vMY+1}')
        g('s_nop 0')
        g(cfill(vMY, CY))
    g('s_setprio 2' if qp != 2 else 's_nop 0')
    g('s_cbranch_scc0 L_prio_b')
    g.label('L_go')
    stamp()
    if dbg: g('s_memrealtime s[48:49]')

    g.c('X phase, tile 0')
    for i in range(16):
        g(EX(SX + i))
        if not qp and i == 2: g(QK(SY, KB[0], QY, CY))
        if qp == 1 and i == bcy[0]: g(BC(SY, VB[1] + 4, SY))
        if qp == 1 and i == bcy[1]: g(BC(CY, VB[1] + 4, None))
        if qp == 2 and i == 1: g(BC(CX, VB[1], None))
        if qp == 2 and i == 6: g(offs(SY, VB[1] + 4))
        if qp == 2 and i == 8: g(BC(SY, VB[1] + 4, SY))
        if qp == 2 and i == 12: g(BC(CY, VB[1] + 4, None))
        if i == barpos:
            if qp == 2: g('s_setprio 1')
            g('s_cbranch_scc0 L_nobar')
            if qp == 2: g('s_setprio 2')
            if stamps == 2: stamp(idx=14)
            g('s_barrier')
            g.label('L_nobar')
            stamp()
            g([rdV(0, 0), rdV(0, 1)])
        if i == min(barpos + 1, 15): g([rdV(0, 2), rdV(0, 3)])
        if i == min(barpos + 2, 15): g(rdK(1))
    g.c('Y phase, tile 0')
    for i in range(16):
        g(EX(SY + i))
        if i == 1: g(['s_waitcnt lgkmcnt(3)', PV(OX, VB[0], SX), rdV(1, 0)])
        if i == 4: g(['s_waitcnt lgkmcnt(2)', PV(OX, VB[0] + 4, SX + 8), rdV(1, 1)])
        if i == 7: g(['s_waitcnt lgkmcnt(2)', QK(SX, KB[1], QX, CX), rdV(1, 2)])
        if i == 11: g([PV(OY, VB[0], SY), 's_nop 0', rdV(1, 3)])
        if i == ybar and 'Wh' in sched: g(['s_cbranch_scc0 L_nobar2', 's_barrier', 'L_nobar2:'])

    def phase(p, extra=None):
        extra = extra or {}
        t = p // 2
        isX = (p % 2 == 0)
        b = t % 2; nb = 1 - b
        last = (t == 63)
        sl = {'a0': [], 'a1': [], 'a2': []}
        if isX:
            S, Sp, O, Op, Cp, Qp, Kq = SX, SY, OX, OY, CY, QY, KB[b]
            H = VB[nb] + 4
            sl['a0'] = ['s_waitcnt lgkmcnt(2)']
            if not last:
                sl['a0'] += [rdK(t + 1)]
                sl['a1'] = [rdV(t + 1, 0)]
                sl['a2'] = ['s_waitcnt lgkmcnt(2)', rdV(t + 1, 1)]
            else:
                sl['a2'] = ['s_waitcnt lgkmcnt(0)']
        else:
            S, Sp, O, Op, Cp, Qp, Kq = SY, SX, OY, OX, CX, QX, (KB[nb] if not last else None)
            H = VB[b] + 4
            if not last:
                sl['a0'] = ['s_waitcnt lgkmcnt(2)', rdV(t + 1, 2)]
                sl['a1'] = [rdV(t + 1, 3)]
                if (t + 2) % 8 == 0 and t + 2 < 64:
                    sl['a2'] = [f'v_add_u32 v{vVA}, v{vVI}, v{vVA}']
                    if loop: sl['a2'] += [f'v_add_u32 v{vKA}, 8192, v{vKA}']
        L = VB[b]
        for k, v in extra.items():
            if k.endswith('pre'): sl[k[:2]] = v + sl[k[:2]]
            else: sl[k] = sl.get(k, []) + v
        g.c(f'{"X" if isX else "Y"} phase, tile {t}')
        for i in range(16):
            g(EX(S + i))
            if i == 1:
                g(PV(Op, H, Sp + 8)); g(sl['a0'])
            if i == qkpos:
                if Kq is not None: g(QK(Sp, Kq, Qp, Cp))
                g(sl['a1'])
            if i == sp1pos:
                g(PV(O, L, S)); g(sl['a2'])

    if stamps: nst[0] += 2
    main_lines = g.lines
    g.lines = []
    g.label('L_loader')
    run_sched(sched[iS+1:iQ])
    g(f's_cmp_lt_u32 s{sWave}, 4')
    g('s_branch L_q')
    g.label('L_prio_b')
    run_sched(sched[iQ+1:])
    if qp != 2: g('s_setprio 1')
    g(f's_cmp_lt_u32 s{sWave}, 4')
    g('s_branch L_go')
    nb_loader = len(guar)
    assert nb_loader >= 1
    spec = {}
    for (p, r) in sites:
        assert p <= 8 * guar[-1] - 3 and p >= 2, (p, guar)
        g.label(f'L_site{p}')
        g(f's_waitcnt vmcnt({vm_after(r)})')
        k = len(guar)
        if stamps == 2 and k < 2: stamp(idx=14 + k)
        g('s_barrier')
        if k < 2: stamp(idx=bst[k])
        elif k < 4: stamp(idx=[12, 11][k-2])
        guar.append(done[0] + 1)
        g(f's_branch L_back{p}')
        spec[p] = [f's_cbranch_scc0 L_site{p}', f'L_back{p}:']
    ool = g.lines
    g.lines = main_lines
    if 'Wh' in sched:
        assert guar[0] == 0.5 and nb_loader >= 2
        guar = guar[1:]
    assert guar[-1] == 16 and len(guar) == len(pa) + 1, (guar, pa)
    for k, p in enumerate(pa):
        assert 2 <= p <= 8 * guar[k] - 3 and (k == 0 or p > pa[k-1]), (p, guar)
        body = (stamp_s(idx=15) if (stamps == 2 and k == 0) else []) + ['s_barrier'] + (stamp_s(idx=[5, 6, 11][k]) if k < 3 else [])
        if p in spec:
            spec[p] = [spec[p][0]] + body + [spec[p][1]]
        else:
            spec[p] = [f's_cbranch_scc0 L_skip{p}'] + body + [f'L_skip{p}:']
    px = 128 - x
    assert px not in spec
    if prio: spec[px] = [f's_cbranch_scc0 L_skip{px}', 's_setprio 0', f'L_skip{px}:']
    for p in range(2, 128):
        phase(p, {'a2pre': spec[p]} if p in spec else {})

    stamp()
    g('s_setprio 3' if prio else 's_nop 0')
    LO, HI = 0x35800000, 0x7b800000
    def chk(O, T):
        return [f'v_pk_add_f32 {vr(T,2)}, {vr(O,2)}, {vr(O+2,2)}',
                f'v_pk_add_f32 {vr(T+2,2)}, {vr(O+4,2)}, {vr(O+6,2)}',
                f'v_pk_add_f32 {vr(T,2)}, {vr(T,2)}, {vr(T+2,2)}',
                f'v_add_f32 v{T}, v{T}, v{T+1}',
                f'v_fma_f32 v{T}, v{T}, 0, v{O+8}',
                f'v_subrev_u32 v{T}, 0x{LO:08x}, v{T}']
    def fin(O, M, P):
        for i in range(4):
            g(f'v_pk_mul_f32 {vr(O+2*i,2)}, {vr(O+2*i,2)}, {vr(M,2)} op_sel_hi:[1,0]')
        for i in range(4):
            g(f'v_cvt_pk_bf16_f32 v{P+i}, v{O+2*i}, v{O+2*i+1}')
    stX = f'buffer_store_dwordx4 {vr(SX+4,4)}, v{vPat}, s[{SRD_O}:{SRD_O+3}], s{sQoff} offen{STM}'
    stY = f'buffer_store_dwordx4 {vr(SX+12,4)}, v{vPat}, s[{SRD_O}:{SRD_O+3}], s{sQoff} offen offset:1024{STM}'
    if tst:
        g(f'v_rcp_f32 v{vMX}, v{OX+8}')
        g(PV(OY, VB[1] + 4, SY + 8))
        g.label('L_epi')
        cx = chk(OX, SX)
        fin(OX, vMX, SX+4)
        g(stX)
        g(cx[:3])
        g(f'v_rcp_f32 v{vMY}, v{OY+8}')
        g(cx[3])
        fin(OY, vMY, SX+12)
        g(stY)
        g(f'v_mov_b32 v{vT2}, 0x{HI-LO:08x}')
        g(cx[4:])
        g(chk(OY, SX+8))
        g(f'v_max_u32 v{SX}, v{SX}, v{SX+8}')
        g(f'v_cmp_ge_u32 vcc, v{SX}, v{vT2}')
        g('s_cbranch_vccnz L_redo')
        g.label('L_store')
    else:
        g(f'v_mov_b32 v{vT2}, 0x{HI-LO:08x}')
        g(PV(OY, VB[1] + 4, SY + 8))
        g.label('L_epi')
        g(f'v_rcp_f32 v{vMX}, v{OX+8}')
        g(chk(OX, SX))
        g(f'v_cmp_ge_u32 s[{sT0}:{sT0+1}], v{SX}, v{vT2}')
        fin(OX, vMX, SX+4)
        g(f'v_rcp_f32 v{vMY}, v{OY+8}')
        g(chk(OY, SX+8))
        g(f'v_cmp_ge_u32 vcc, v{SX+8}, v{vT2}')
        fin(OY, vMY, SX+12)
        g(f's_or_b64 s[{sT0}:{sT0+1}], s[{sT0}:{sT0+1}], vcc')
        g('s_cbranch_scc1 L_redo')
        g.label('L_store')
        g(stX)
        g(stY)
    if stamps:
        g('s_waitcnt vmcnt(0)')
        stamp(); stamp(True)
        g('s_waitcnt lgkmcnt(0)')
        g(f's_mov_b32 s12, s{sWs}'); g(f's_and_b32 s13, s{sWs+1}, 0xffff'); g('s_mov_b32 s14, 0x1000000'); g('s_mov_b32 s15, 0x20000')
        g(f's_lshl_b32 s32, s2, 3'); g(f's_add_u32 s32, s32, s{sWave}'); g('s_lshl_b32 s32, s32, 6')
        g('s_mov_b64 exec, 1')
        g('v_mov_b32 v0, 0')
        for i in list(range(nst[0])) + [10, 11, 12, 13] + ([14, 15] if stamps == 2 else []):
            g(f'v_mov_b32 v1, s{40+2*i}')
            g(f'buffer_store_dword v1, v0, s[12:15], s32 offen offset:{4*i}')
        if stamps == 1:
            g('s_getreg_b32 s33, hwreg(HW_REG_XCC_ID)')
            g('v_mov_b32 v1, s33')
            g(f'buffer_store_dword v1, v0, s[12:15], s32 offen offset:{4*15}')
            g('s_getreg_b32 s33, hwreg(HW_REG_HW_ID)')
            g('v_mov_b32 v1, s33')
            g(f'buffer_store_dword v1, v0, s[12:15], s32 offen offset:{4*14}')
    if dbg:
        g('s_memrealtime s[50:51]')
        g('s_waitcnt vmcnt(0)')
        g('s_memrealtime s[44:45]'); g('s_memtime s[46:47]')
        g('s_waitcnt lgkmcnt(0)')
        g('s_mov_b32 s12, s38'); g('s_and_b32 s13, s39, 0xffff'); g('s_mov_b32 s14, 256'); g('s_mov_b32 s15, 0x20000')
        g('s_mov_b64 exec, 1')
        g('v_mov_b32 v0, 0')
        g('s_and_b32 s40, s40, 0x7fffffff'); g('s_and_b32 s44, s44, 0x7fffffff'); g('s_and_b32 s48, s48, 0x7fffffff'); g('s_and_b32 s50, s50, 0x7fffffff')
        g('s_sub_u32 s32, 0x7fffffff, s40')
        g('v_mov_b32 v1, s32'); g('buffer_atomic_umax v1, v0, s[12:15], 0 offen offset:0')
        g('v_mov_b32 v2, s44'); g('buffer_atomic_umax v2, v0, s[12:15], 0 offen offset:4')
        g('v_mov_b32 v3, s40'); g('buffer_atomic_umax v3, v0, s[12:15], 0 offen offset:8')
        g('s_sub_u32 s32, s44, s40')
        g('v_mov_b32 v4, s32'); g('buffer_atomic_umax v4, v0, s[12:15], 0 offen offset:12')
        g('s_sub_u32 s32, s46, s42')
        g('v_mov_b32 v5, s32'); g('buffer_atomic_umax v5, v0, s[12:15], 0 offen offset:16')
        g('s_sub_u32 s32, s48, s40')
        g('s_lshr_b32 s33, s28, 2')
        g('s_lshl_b32 s33, s33, 2')
        g('v_mov_b32 v6, s32'); g('buffer_atomic_umax v6, v0, s[12:15], s33 offen offset:20')
        g('v_mov_b32 v7, s32'); g('buffer_atomic_add v7, v0, s[12:15], s33 offen offset:28')
        g('s_sub_u32 s32, s50, s40')
        g('v_mov_b32 v8, s32'); g('buffer_atomic_add v8, v0, s[12:15], s33 offen offset:36')
        g('s_sub_u32 s32, s44, s40')
        g('v_mov_b32 v9, s32'); g('buffer_atomic_add v9, v0, s[12:15], s33 offen offset:44')
        g('s_sub_u32 s32, s46, s42')
        g('v_mov_b32 v10, s32'); g('buffer_atomic_add v10, v0, s[12:15], s33 offen offset:52')
    g.label('L_end')
    g('s_endpgm')

    if oolpos: g.lines[ool_at:ool_at] = ['    s_branch L_setup'] + ool
    else: g.lines.extend(ool)

    g.label('L_redo')
    g(f's_cmp_lg_u32 s{sFlag}, 0')
    g('s_cbranch_scc1 L_store')
    g(f's_mov_b32 s{sFlag}, 1')
    g('s_waitcnt vmcnt(0)')
    g(f's_mov_b32 s{sCnt}, 64')
    g(f'v_mov_b32 v{vKA}, v{vLin}')
    g(f'v_mov_b32 v{vMX}, 0xff800000')
    g(f'v_mov_b32 v{vMY}, 0xff800000')
    g.label('L_maxloop')
    g(f'ds_read_b128 {vr(KB[0],4)}, v{vKA}')
    g(f'v_add_u32 v{vKA}, 1024, v{vKA}')
    g(f's_sub_u32 s{sCnt}, s{sCnt}, 1')
    g('s_waitcnt lgkmcnt(0)')
    g(QK(SX, KB[0], QX, None))
    g(QK(SY, KB[0], QY, None))
    g('s_nop 11')
    for i in range(8):
        g(f'v_max3_f32 v{vMX}, v{SX+2*i}, v{SX+2*i+1}, v{vMX}')
    g('s_nop 3')
    for i in range(8):
        g(f'v_max3_f32 v{vMY}, v{SY+2*i}, v{SY+2*i+1}, v{vMY}')
    g(f's_cmp_lg_u32 s{sCnt}, 0')
    g('s_cbranch_scc1 L_maxloop')
    g(f'v_mov_b32 v{vT0}, v{vMX}')
    g(f'v_mov_b32 v{vT1}, v{vMY}')
    g(f'v_mov_b32 v{vKA}, v{vLin}')
    g(f'v_mov_b32 v{vVA}, v{vVA0}')
    g(f'v_permlane32_swap_b32 v{vMX}, v{vT0}')
    g(f'v_permlane32_swap_b32 v{vMY}, v{vT1}')
    g(f'v_lshrrev_b32 v{vVI}, 3, v{vVI}')
    g(f'v_mov_b32 v{vT3}, 0x41300000')
    g(f'v_max_f32 v{vMX}, v{vMX}, v{vT0}')
    g(f'v_max_f32 v{vMY}, v{vMY}, v{vT1}')
    g(f'v_add_f32 v{vMX}, v{vT3}, v{vMX}')
    g(f'v_add_f32 v{vMY}, v{vT3}, v{vMY}')
    for i in range(16):
        g(f'v_sub_f32 v{CX+i}, 0, v{vMX}')
        g(f'v_sub_f32 v{CY+i}, 0, v{vMY}')
        g(f'v_mov_b64 {vr(OX+2*i,2)}, 0')
    g(f's_mov_b32 s{sCnt}, 64')
    g.label('L_slow')
    g(f'ds_read_b128 {vr(KB[0],4)}, v{vKA}')
    for k in range(4):
        g(f'ds_read_b64_tr_b16 {vr(VB[0]+2*k,2)}, v{vVA} offset:{VO[k]}')
    g(f'v_add_u32 v{vKA}, 1024, v{vKA}')
    g(f'v_add_u32 v{vVA}, v{vVI}, v{vVA}')
    g(f's_sub_u32 s{sCnt}, s{sCnt}, 1')
    g('s_waitcnt lgkmcnt(0)')
    g(QK(SX, KB[0], QX, CX))
    g(QK(SY, KB[0], QY, CY))
    g('s_nop 11')
    for i in range(32):
        g(EX(SX + i))
    g('s_nop 1')
    g(PV(OX, VB[0], SX))
    g(PV(OY, VB[0], SY))
    g(PV(OX, VB[0] + 4, SX + 8))
    g(PV(OY, VB[0] + 4, SY + 8))
    g('s_nop 15')
    g(f's_cmp_lg_u32 s{sCnt}, 0')
    g('s_cbranch_scc1 L_slow')
    if tst: g(f'v_rcp_f32 v{vMX}, v{OX+8}')
    g('s_branch L_epi')

    g.raw('.section .rodata,"a"')
    g.raw('.p2align 6')
    g.raw(f'.amdhsa_kernel {NAME}_kernel')
    g.raw(f'  .amdhsa_next_free_vgpr {NV}')
    g.raw(f'  .amdhsa_next_free_sgpr {80 if (stamps or dbg) else 40}')
    g.raw(f'  .amdhsa_accum_offset {(NV+3)//4*4}')
    g.raw('  .amdhsa_group_segment_fixed_size 0')
    g.raw('  .amdhsa_kernarg_size 48')
    g.raw('  .amdhsa_user_sgpr_count 2')
    g.raw('  .amdhsa_user_sgpr_kernarg_segment_ptr 1')
    g.raw('  .amdhsa_system_sgpr_workgroup_id_x 1')
    g.raw('.end_amdhsa_kernel')
    return '\n'.join(g.lines) + '\n'

if __name__ == '__main__':
    out = sys.argv[1] if len(sys.argv) > 1 else f'cdna_kernels/{NAME}.s'
    kw = dict(a.split('=') for a in sys.argv[2:])
    kw = {k: (v if k in ('sched', 'pa', 'sites') else int(v)) for k, v in kw.items()}
    open(out, 'w').write(build(**kw))
```
